```python
import torch

def _softmax(x, axis=-1):
    return torch.softmax(x, dim=axis)
def _gelu(x):
    return torch.nn.functional.gelu(x, approximate="tanh")
def _silu(x):
    return torch.nn.functional.silu(x)
def _sigmoid(x):
    return torch.sigmoid(x)
def _layernorm(x, axis=-1, eps=1e-5):
    m = x.mean(dim=axis, keepdim=True)
    v = x.var(dim=axis, keepdim=True, unbiased=False)
    return (x - m) / torch.sqrt(v + eps)
def _scatter_add(tgt, idx, src, axis=0):
    return tgt.clone().index_add_(axis, idx, src)
def _segment_sum(src, seg, n):
    out = torch.zeros((n,) + src.shape[1:], dtype=src.dtype)
    return out.index_add_(0, seg, src)
def _pad(x, pw):
    flat = tuple(v for pair in reversed(pw) for v in pair)
    return torch.nn.functional.pad(x, flat)

kernel_name = 'standalone__edge_featured_mpnn_mpnn__graph'

def setup_inputs():

    _w = (lambda a: (lambda t: t.to(torch.bfloat16) if t.is_floating_point() else t)(torch.as_tensor(a)))
    N, deg, D, De = 10000, 16, 128, max(16, 1)
    E = N * deg
    H = 2 * D
    return {
        "x": _w((lambda *s: torch.randn(*s, dtype=torch.bfloat16) * 0.05)(N, D)),
        "e_attr": _w((lambda *s: torch.randn(*s, dtype=torch.bfloat16) * 0.8)(E, De)),
        "src": _w((lambda lo, hi, *s: torch.randint(lo, hi, s))(0, N, E).to(torch.int64)),
        "dst": _w((lambda lo, hi, *s: torch.randint(lo, hi, s))(0, N, E).to(torch.int64)),
        "w1": _w((lambda *s: torch.randn(*s, dtype=torch.bfloat16) * 0.8)(2 * D + De, H) * (1.0 / (2 * D + De) ** 0.5)),
        "b1": _w((lambda *s: torch.randn(*s, dtype=torch.bfloat16) * 0.4)(H) * 0.01),
        "w2": _w((lambda *s: torch.randn(*s, dtype=torch.bfloat16) * 0.05)(H, D) * (1.0 / H ** 0.5)),
        "b2": _w((lambda *s: torch.randn(*s, dtype=torch.bfloat16) * 0.05)(D) * 0.01),
    }

def reference(x, e_attr, src, dst, w1, b1, w2, b2):
    N, D = x.shape
    h_src = x[src]
    h_dst = x[dst]
    m_in = torch.concatenate([h_src, h_dst, e_attr], axis=-1)
    h = _silu(m_in @ w1 + b1)
    msg = h @ w2 + b2
    return _segment_sum(msg, dst, N)
```

```python
import re, sys, math

NB=512
NCH=80
CH=2000
CAP=16
WS_W1=0; WS_W2=139264; WS_B1=204800; WS_B2=205824; WS_ID=206336; WS_LIST=262144
WS_END=WS_LIST+NB*NCH*CAP*4
MAGIC=429497
for n in range(10000):
    b=(n*MAGIC)>>23
    assert b==(n*512)//10000 and n*MAGIC<2**32
    st=(b*625+31)>>5
    assert st<=n< ((b+1)*625+31)>>5 and n-st<20
NEG_LOG2E=0xbfb8aa3b
NEG_LN2=0xbf317218
NULLI=0x00ffffff

class A:
    def __init__(s): s.l=[]
    def __call__(s,*lines):
        for x in lines:
            for y in x.split("\n"):
                y=y.strip()
                if y: s.l.append(y)
    def text(s):
        out=[]
        for y in s.l:
            if y.endswith(":") or y.startswith("."): out.append(y)
            else: out.append("    "+y)
        return "\n".join(out)+"\n"

def vr(a,n=1): return f"v{a}" if n==1 else f"v[{a}:{a+n-1}]"
def sr(a,n=1): return f"s{a}" if n==1 else f"s[{a}:{a+n-1}]"

def srd(a,d,base,nrec,stride=0):
    a(f"s_mov_b32 s{d}, s{base}")
    if stride: a(f"s_or_b32 s{d+1}, s{base+1}, 0x{stride<<16:x}")
    else: a(f"s_mov_b32 s{d+1}, s{base+1}")
    a(f"s_mov_b32 s{d+2}, {nrec}")
    a(f"s_mov_b32 s{d+3}, 0x00020000")

def gen_k1():
    a=A()
    a("k1_bin_prep_kernel:")
    a(f"s_cmp_ge_u32 s2, {NCH+26}")
    a("s_cbranch_scc1 K1_EXIT")
    a("s_load_dwordx2 s[4:5], s[0:1], 80")
    a(f"s_cmp_ge_u32 s2, {NCH}")
    a("s_cbranch_scc1 K1_PREP")
    a("s_load_dwordx4 s[8:11], s[0:1], 16")
    a("v_lshlrev_b32 v1, 4, v0")
    a("v_mov_b32 v4, -1","v_mov_b32 v5, -1","v_mov_b32 v6, -1","v_mov_b32 v7, -1")
    a("v_lshlrev_b32 v2, 2, v0","v_mov_b32 v3, 0")
    for i in range(4): a(f"ds_write_b128 v1, v[4:7] offset:{i*8192}")
    a("ds_write_b32 v2, v3 offset:32768")
    a("s_mul_i32 s3, s2, 8000")
    a("s_waitcnt lgkmcnt(0)")
    a("s_add_u32 s12, s8, s3","s_addc_u32 s13, s9, 0","s_mov_b32 s14, 8000","s_mov_b32 s15, 0x00020000")
    a("s_add_u32 s16, s10, s3","s_addc_u32 s17, s11, 0","s_mov_b32 s18, 8000","s_mov_b32 s19, 0x00020000")
    a("buffer_load_dwordx4 v[8:11], v1, s[16:19], 0 offen")
    a("buffer_load_dwordx4 v[12:15], v1, s[12:15], 0 offen")
    srd(a,20,4,WS_END)
    a(f"s_mov_b32 s24, {MAGIC}","s_movk_i32 s25, 625")
    a("s_barrier")
    a("v_cmp_gt_u32 vcc, 500, v0")
    a("s_and_saveexec_b64 s[26:27], vcc")
    a("s_cbranch_execz K1_BIN_SKIP")
    a("v_mov_b32 v3, 1")
    a("s_waitcnt vmcnt(1)")
    for j in range(4):
        a(f"v_mul_u32_u24 v{16+j}, s24, v{8+j}")
    for j in range(4):
        a(f"v_lshrrev_b32 v{16+j}, 23, v{16+j}")
    for j in range(4):
        a(f"v_lshlrev_b32 v{20+j}, 2, v{16+j}")
    for j in range(4):
        a(f"ds_add_rtn_u32 v{24+j}, v{20+j}, v3 offset:32768")
    for j in range(4):
        a(f"v_mad_u32_u24 v{28+j}, v{16+j}, s25, 31")
    for j in range(4):
        a(f"v_lshrrev_b32 v{28+j}, 5, v{28+j}")
    for j in range(4):
        a(f"v_sub_u32 v{28+j}, v{8+j}, v{28+j}")
    a("v_lshlrev_b32 v2, 21, v0")
    a("s_waitcnt vmcnt(0)")
    for j in range(4):
        a(f"v_lshl_or_b32 v{28+j}, v{28+j}, 14, v{12+j}")
    for j in range(4):
        a(f"v_or_b32 v{28+j}, v{28+j}, v2")
        if j: a(f"v_add_u32 v{28+j}, {j<<19}, v{28+j}")
    for j in range(4):
        a(f"v_lshlrev_b32 v{16+j}, 6, v{16+j}")
    a("v_mov_b32 v3, 34816")
    a("s_waitcnt lgkmcnt(0)")
    for j in range(4):
        a(f"v_lshl_add_u32 v{16+j}, v{24+j}, 2, v{16+j}")
        a(f"v_cmp_gt_u32 vcc, {CAP}, v{24+j}")
        a("s_nop 1")
        a(f"v_cndmask_b32 v{16+j}, v3, v{16+j}, vcc")
        a(f"ds_write_b32 v{16+j}, v{28+j}")
    a("K1_BIN_SKIP:")
    a("s_mov_b64 exec, s[26:27]")
    a("s_waitcnt lgkmcnt(0)")
    a("s_barrier")
    a("v_lshrrev_b32 v2, 2, v0")
    a("v_lshlrev_b32 v3, 2, v2")
    for i in range(4):
        a(f"ds_read_b128 v[{8+4*i}:{11+4*i}], v1 offset:{i*8192}")
        a(f"ds_read_b32 v{24+i}, v3 offset:{32768+i*512}")
    a("s_movk_i32 s25, 5120")
    a("v_mul_u32_u24 v2, s25, v2")
    a("v_and_b32 v3, 3, v0")
    a("v_lshl_add_u32 v2, v3, 4, v2")
    a("s_lshl_b32 s3, s2, 6")
    a(f"s_add_u32 s3, s3, {WS_LIST}")
    a("v_mov_b32 v4, -2")
    for i in range(4):
        a(f"s_waitcnt lgkmcnt({6-2*i})")
        a(f"v_cmp_lt_u32 vcc, {CAP}, v{24+i}")
        a("s_nop 1")
        for k in range(4): a(f"v_cndmask_b32 v{8+4*i+k}, v{8+4*i+k}, v4, vcc")
        a(f"buffer_store_dwordx4 v[{8+4*i}:{11+4*i}], v2, s[20:23], s3 offen")
        if i<3: a(f"s_add_u32 s3, s3, {128*5120}")
    a("s_endpgm")
    a("K1_PREP:")
    a(f"s_sub_u32 s3, s2, {NCH}")
    a("s_load_dwordx4 s[8:11], s[0:1], 32")
    a("s_load_dwordx4 s[12:15], s[0:1], 48")
    a("v_and_b32 v1, 63, v0")
    a("v_lshrrev_b32 v2, 5, v1")
    a("v_and_b32 v3, 31, v0")
    a("s_waitcnt lgkmcnt(0)")
    srd(a,20,4,WS_END)
    a("s_cmp_ge_u32 s3, 17")
    a("s_cbranch_scc1 K1_PREP2")
    srd(a,16,8,272*256*2)
    a("v_lshrrev_b32 v4, 6, v0")
    a("v_lshl_add_u32 v4, v4, 5, v3")
    a("v_lshlrev_b32 v4, 1, v4")
    a("v_lshl_add_u32 v4, v2, 12, v4")
    a("s_lshl_b32 s6, s3, 13")
    for j in range(8): a(f"buffer_load_ushort v{8+j}, v4, s[16:19], s6 offen offset:{j*512}")
    a(f"s_mov_b32 s7, 0x{NEG_LOG2E:x}")
    a("v_lshlrev_b32 v5, 4, v0")
    a("s_waitcnt vmcnt(0)")
    for j in range(8): a(f"v_lshlrev_b32 v{8+j}, 16, v{8+j}")
    for j in range(8): a(f"v_mul_f32 v{8+j}, s7, v{8+j}")
    for j in range(4): a(f"v_cvt_pk_bf16_f32 v{16+j}, v{8+2*j}, v{9+2*j}")
    a(f"buffer_store_dwordx4 v[16:19], v5, s[20:23], s6 offen")
    a("s_endpgm")
    a("K1_PREP2:")
    a("s_cmp_ge_u32 s3, 25")
    a("s_cbranch_scc1 K1_PREP3")
    srd(a,16,12,256*128*2)
    a("s_sub_u32 s3, s3, 17")
    a("v_lshrrev_b32 v4, 8, v0")
    a("s_lshl_b32 s6, s3, 1")
    a("v_add_u32 v4, s6, v4")
    a("v_bfe_u32 v5, v0, 6, 2")
    a("v_bfe_u32 v6, v3, 2, 1","v_lshlrev_b32 v6, 4, v6")
    a("v_lshrrev_b32 v7, 3, v3","v_lshl_add_u32 v6, v7, 2, v6")
    a("v_and_b32 v7, 3, v3","v_add_u32 v6, v6, v7")
    a("v_lshl_add_u32 v6, v5, 5, v6")
    a("v_lshlrev_b32 v6, 1, v6")
    a("v_lshl_add_u32 v6, v4, 12, v6")
    a("v_lshl_add_u32 v6, v2, 10, v6")
    for q in range(2):
        for r in range(4): a(f"buffer_load_ushort v{8+4*q+r}, v6, s[16:19], 0 offen offset:{(8*q+r)*256}")
    a("v_lshl_add_u32 v5, v5, 4, v4","v_lshlrev_b32 v5, 10, v5","v_lshl_add_u32 v5, v1, 4, v5")
    a(f"s_mov_b32 s6, {WS_W2}")
    a("s_waitcnt vmcnt(0)")
    for j in range(4): a(f"v_lshl_or_b32 v{16+j}, v{9+2*j}, 16, v{8+2*j}")
    a(f"buffer_store_dwordx4 v[16:19], v5, s[20:23], s6 offen")
    a("s_endpgm")
    a("K1_PREP3:")
    srd(a,16,10,512)
    srd(a,24,14,256)
    a("v_lshlrev_b32 v4, 1, v0","v_lshlrev_b32 v5, 2, v0")
    a("buffer_load_ushort v8, v4, s[16:19], 0 offen")
    a("buffer_load_ushort v9, v4, s[24:27], 0 offen")
    a("v_lshrrev_b32 v6, 4, v0","v_and_b32 v7, 15, v0","v_lshlrev_b32 v7, 1, v7")
    a("v_mov_b32 v10, 0","v_mov_b32 v11, 0x3f80","v_mov_b32 v12, 0x3f800000")
    a("v_cmp_eq_u32 vcc, v6, v7","s_nop 1","v_cndmask_b32 v10, v10, v11, vcc")
    a("v_add_u32 v7, 1, v7")
    a("v_cmp_eq_u32 vcc, v6, v7","s_nop 1","v_cndmask_b32 v10, v10, v12, vcc")
    a(f"s_mov_b32 s6, {WS_ID}")
    a("buffer_store_dword v10, v5, s[20:23], s6 offen")
    a(f"s_mov_b32 s7, 0x{NEG_LOG2E:x}")
    a("s_waitcnt vmcnt(1)")
    a("v_lshlrev_b32 v8, 16, v8","v_lshlrev_b32 v9, 16, v9","v_mul_f32 v8, s7, v8")
    a("v_cmp_gt_u32 vcc, 256, v0","s_and_saveexec_b64 s[28:29], vcc","s_cbranch_execz K1_EXIT")
    a(f"s_mov_b32 s6, {WS_B1}")
    a("buffer_store_dword v8, v5, s[20:23], s6 offen")
    a("v_cmp_gt_u32 vcc, 128, v0","s_and_saveexec_b64 s[28:29], vcc","s_cbranch_execz K1_EXIT")
    a(f"s_mov_b32 s6, {WS_B2}")
    a("buffer_store_dword v9, v5, s[20:23], s6 offen")
    a("K1_EXIT:")
    a("s_endpgm")
    return a

if __name__=="__main__":
    print(gen_k1().text())
```

```python
import re, sys
from gen import *

DEG=0; CNT=128; FLG=256
LS=1024; LE=6656; LD=12288
XR=17920; XSLOT=8704; XBLK=1088
ER=52736; OR=60928; LDS2=69120
EX=1024
X0=2; X1=4; AX=6
vXA=[8,9]; vEA=10; vOA=[11,12]; vOB=[13,14]; vLX=15; vLA=1
W1S=16; W1E=80; QF=88; S=104; U=136; H=152; EF=160; OA=164; OB=172; T=[180,196]; XF=212
TMP=244
sX=8; sAUX=12; sWS=16; sOUT=20
sWAVE=32; sB=33; sSTART=34; sCOUNT=35; sN=36; sNT=37; sREM=38; sXM0=39; sAM0=40; sRING=41
sMASK=44
sF0=56; sF1=58; sHALF=59; sW2=60; sT=61

def mfma(d,a,b,c):
    cs="0" if c is None else vr(c,16)
    return f"v_mfma_f32_32x32x16_bf16 {vr(d,16)}, {vr(a,4)}, {vr(b,4)}, {cs}"

def valu_stream(t):
    ex=lambda i:f"v_exp_f32 v{U+i}, v{t+i}"
    ad=lambda i:f"v_add_f32 v{U+i}, 1.0, v{U+i}"
    rc=lambda i:f"v_rcp_f32 v{U+i}, v{U+i}"
    mu=lambda i:f"v_mul_f32 v{U+i}, v{t+i}, v{U+i}"
    cv=lambda j:f"v_cvt_pk_bf16_f32 v{H+j}, v{U+2*j}, v{U+2*j+1}"
    g=lambda f,k:[f(4*k+i) for i in range(4)]
    s=g(ex,0)+g(ex,1)+g(ad,0)+g(rc,0)+g(ex,2)+g(ad,1)+g(rc,1)+g(mu,0)+g(ex,3)+g(ad,2)+g(rc,2)+g(mu,1)+[cv(0),cv(1)]+g(ad,3)+g(rc,3)+g(mu,2)+[cv(2),cv(3)]+g(mu,3)+[cv(4),cv(5),cv(6),cv(7)]
    assert len(s)==72
    return s

def mchain(c,tdst):
    l=[]
    for s in range(8): l.append((mfma(tdst,XF+4*s,W1S+(c*8+s)*4,None if s==0 else tdst),("x",s)))
    l.append((mfma(tdst,EF,W1E+4*c,tdst),("e",0)))
    for u in range(2): l.append((mfma(tdst,OA+4*u,QF+(c*2+u)*4,tdst),("oa",u)))
    return l

def frag_read(kind,i,p):
    if kind=="x": return f"ds_read_b128 {vr(XF+4*i,4)}, v{vXA[i&1]} offset:{p*XSLOT+(i>>1)*64}", [XF+4*i+k for k in range(4)]
    if kind=="e": return f"ds_read_b128 {vr(EF,4)}, v{vEA} offset:{p*2048}", [EF+k for k in range(4)]
    if kind=="oa": return f"ds_read_b128 {vr(OA+4*i,4)}, v{vOA[i]} offset:{p*2048}", [OA+4*i+k for k in range(4)]
def ob_read(s2,q,p,areg=None):
    ar=vOB[q] if areg is None else areg[q]
    off=(p*2048 if areg is None else 0)+s2*1024
    return f"ds_read_b64_tr_b16 {vr(OB+4*s2+2*q,2)}, v{ar} offset:{off}", [OB+4*s2+2*q,OB+4*s2+2*q+1]

class Fifo:
    def __init__(s): s.q=[]
    def push(s,regs): s.q.append(set(regs))
    def need(s,regs):
        regs=set(regs); last=-1
        for i,x in enumerate(s.q):
            if x&regs: last=i
        if last<0: return None
        n=len(s.q)-1-last
        s.q=s.q[last+1:]
        assert n<=15
        return f"s_waitcnt lgkmcnt({n})"

def regs_of(tok):
    m=re.fullmatch(r"v\[(\d+):(\d+)\]",tok)
    if m: return list(range(int(m.group(1)),int(m.group(2))+1))
    m=re.fullmatch(r"v(\d+)",tok)
    if m: return [int(m.group(1))]
    return []

def merge(valu,events):
    out=[]; ev=sorted(events,key=lambda e:e[0]); k=0
    for i in range(len(valu)+1):
        while k<len(ev) and ev[k][0]<=i:
            out+=ev[k][1]; k+=1
        if i<len(valu): out.append(valu[i])
    return out

MPOS=[7,12,17,22,27,32,37,42,47,52,57]
GB=2; GA=66

def with_waits(seq,fifo):
    out=[]
    for it in seq:
        if isinstance(it,tuple):
            out.append(it[1]); fifo.push(it[2]); continue
        if it.startswith("v_mfma") or it.startswith("buffer_load"):
            toks=[t.strip() for t in it.split(None,1)[1].split(",")]
            rs=[]
            for t in toks: rs+=regs_of(t.split()[0])
            w=fifo.need(rs)
            if w: out.append(w)
        out.append(it)
    return out

def G(c,s2): return mfma(S+16*c,H+4*s2,OB+4*s2,S+16*c)

def slotA(p,fifo,tail=False):
    p1=(p+1)%4
    ev=[]
    obs=[]
    for s2 in range(2):
        for q in range(2):
            t,r=ob_read(s2,q,p,[TMP,TMP+1] if tail else None); obs.append(("ds",t,r))
    ev.append((GB,[G(1,1)]+obs))
    mc=mchain(1,T[1])
    for k,(m,fr) in enumerate(mc):
        l=[m]
        if not tail:
            if k==0: l=["s_waitcnt vmcnt(3)","s_barrier"]+l
            t,r=frag_read(fr[0],fr[1],p1); l.append(("ds",t,r))
        ev.append((MPOS[k],l))
    ev.append((GA,[G(0,0)]))
    return with_waits(merge(valu_stream(T[0]),ev),fifo)

def slotB(p,fifo,tail=False):
    p3=(p+3)%4
    ev=[(GB,[G(0,1)])]
    if not tail:
        off=(p+3)*128
        idx=[("ds",f"ds_read_b32 v{X0}, v{vLX} offset:{off}",[X0]),("ds",f"ds_read_b32 v{X1}, v{vLX} offset:{off+16}",[X1]),("ds",f"ds_read_b32 v{AX}, v{vLA} offset:{off}",[AX])]
        mc=mchain(0,T[0])
        for k,(m,fr) in enumerate(mc):
            l=[m]
            if k==3: l+=idx
            ev.append((MPOS[k],l))
        ev.append((MPOS[6]+2,[f"s_add_u32 m0, s{sXM0}, {p3*XSLOT}"]))
        ev.append((MPOS[6]+3,[f"buffer_load_dwordx4 v[{X0}:{X0+1}], s[{sX}:{sX+3}], 0 idxen offen lds"]))
        ev.append((MPOS[7]+2,[f"s_add_u32 m0, s{sXM0}, {p3*XSLOT+XBLK}"]))
        ev.append((MPOS[7]+3,[f"buffer_load_dwordx4 v[{X1}:{X1+1}], s[{sX}:{sX+3}], 0 idxen offen lds"]))
        ev.append((MPOS[8]+2,[f"s_add_u32 m0, s{sAM0}, {p3*2048}"]))
        ev.append((MPOS[8]+3,[f"buffer_load_dwordx4 v[{AX}:{AX+1}], s[{sAUX}:{sAUX+3}], 0 idxen offen lds"]))
    ev.append((GA,[G(1,0)]))
    return with_waits(merge(valu_stream(T[1]),ev),fifo)

TRANS=("v_exp_f32","v_rcp_f32","v_log_f32","v_rsq_f32","v_sqrt_f32")
def parse(ins):
    op=ins.split()[0]
    rest=ins[len(op):].strip()
    toks=[t.strip() for t in rest.split(",")] if rest else []
    toks=[t.split()[0] if t else t for t in toks]
    return op,toks
def check(lines,name=""):
    hist=[]
    errs=0
    pos=0
    lastw={}
    lastC={}
    for ins in lines:
        if ins.endswith(":") or ins.startswith("."): continue
        op,t=parse(ins)
        if op=="s_nop":
            pos+=int(t[0])+1; continue
        if op.startswith("v_mfma"):
            d=regs_of(t[0]); a=regs_of(t[1]); b=regs_of(t[2]); c=regs_of(t[3])
            for r in a+b:
                if r in lastw:
                    p,k,_=lastw[r]
                    need={"valu":2,"trans":2,"mfma":12}.get(k,0)
                    if pos-p-1<need: print(name,"HAZ A/B",ins,r,k,pos-p-1); errs+=1
            for r in c:
                if r in lastw:
                    p,k,dd=lastw[r]
                    if k in("valu","trans") and pos-p-1<2: print(name,"HAZ C",ins,r); errs+=1
                    if k=="mfma" and dd!=tuple(c) and pos-p-1<10: print(name,"HAZ C overlap",ins); errs+=1
            for r in d:
                if r in lastw and lastw[r][1]=="mfma" and (not c or lastw[r][2]!=tuple(c)):
                    if pos-lastw[r][0]-1<10 and lastw[r][2]!=tuple(d): print(name,"HAZ WAW mfma",ins); errs+=1
            for r in d: lastw[r]=(pos,"mfma",tuple(d))
            for r in c: lastC[r]=pos
        elif op.startswith("v_") :
            if op.startswith("v_cmp") or op.startswith("v_readfirstlane") or op.startswith("v_readlane"):
                d=[]; s=[r for x in t[1:] for r in regs_of(x)]
            else:
                d=regs_of(t[0]); s=[r for x in t[1:] for r in regs_of(x)]
            tr=op.replace("_e32","").replace("_e64","") in TRANS
            for r in s+d:
                if r in lastw:
                    p,k,_=lastw[r]
                    if k=="mfma" and pos-p-1<12: print(name,"HAZ mfma->valu",ins,r,pos-p-1); errs+=1
            for r in s:
                if r in lastw:
                    p,k,_=lastw[r]
                    if k=="trans" and not tr and pos-p-1<1: print(name,"HAZ trans",ins); errs+=1
                    if op.startswith("v_readfirstlane") and k in("valu","trans") and pos-p-1<1: print(name,"HAZ rfl",ins); errs+=1
            for r in d:
                if r in lastC and pos-lastC[r]-1<7: print(name,"HAZ srcC WAR",ins); errs+=1
                lastw[r]=(pos,"trans" if tr else "valu",None)
        elif op.startswith("ds_read") or (op.startswith("buffer_load") and "lds" not in ins) :
            d=regs_of(t[0])
            for r in d:
                if r in lastw and lastw[r][1]=="mfma" and pos-lastw[r][0]-1<12: print(name,"HAZ load over mfma D",ins); errs+=1
                lastw[r]=(pos,"mem",None)
        elif op.startswith("ds_write") or op.startswith("buffer_store"):
            for x in t:
                for r in regs_of(x):
                    if r in lastw and lastw[r][1]=="mfma" and pos-lastw[r][0]-1<12: print(name,"HAZ mfma->mem",ins); errs+=1
        pos+=1
    return errs
```

```python
import sys
from gen import *
from gen2 import *
import gen2

PROF=int(sys.argv[2]) if len(sys.argv)>2 else 0
WS_PROF=WS_END
WS_TOT=WS_END+512*4*64

def stamp(a,i):
    if not PROF: return
    a(f"s_memtime s[{64+2*i}:{65+2*i}]")

def dma_prologue(a):
    a(f"v_mov_b32 v{vLX}, v{TMP+2}",f"v_mov_b32 v{vLA}, v{TMP+3}")
    pairs=[(X0,X1,AX),(XF,XF+2,XF+4),(XF+6,XF+8,XF+10)]
    for t in (1,2):
        x0,x1,ax=pairs[t]
        a(f"v_mov_b32 v{x0+1}, v{X0+1}",f"v_mov_b32 v{x1+1}, v{X0+1}",f"v_mov_b32 v{ax+1}, v{AX+1}")
    for t in range(3):
        x0,x1,ax=pairs[t]
        a(f"ds_read_b32 v{x0}, v{vLX} offset:{t*128}",f"ds_read_b32 v{x1}, v{vLX} offset:{t*128+16}",f"ds_read_b32 v{ax}, v{vLA} offset:{t*128}")
    for t in range(3):
        x0,x1,ax=pairs[t]
        a(f"s_add_u32 m0, s{sXM0}, {t*XSLOT}")
        a(f"s_waitcnt lgkmcnt({6-3*t})")
        a(f"buffer_load_dwordx4 v[{x0}:{x0+1}], s[{sX}:{sX+3}], 0 idxen offen lds")
        a(f"s_add_u32 m0, s{sXM0}, {t*XSLOT+XBLK}","s_nop 0")
        a(f"buffer_load_dwordx4 v[{x1}:{x1+1}], s[{sX}:{sX+3}], 0 idxen offen lds")
        a(f"s_add_u32 m0, s{sAM0}, {t*2048}","s_nop 0")
        a(f"buffer_load_dwordx4 v[{ax}:{ax+1}], s[{sAUX}:{sAUX+3}], 0 idxen offen lds")

def list_fill(a,tid16,vnull4):
    for i in range(4): a(f"ds_write_b128 v{tid16}, {vr(vnull4,4)} offset:{LS+i*4096}")
    a(f"v_cmp_gt_u32 vcc, 512, v{tid16}")
    a("s_and_saveexec_b64 s[42:43], vcc")
    a(f"ds_write_b128 v{tid16}, {vr(vnull4,4)} offset:{LS+16384}")
    a("s_mov_b64 exec, s[42:43]")

def compact(a,nc,maskgen,fieldgen,tP,tA,tB,tC,tOne,tz):
    for j in range(nc): maskgen(j)
    a("s_nop 0")
    a(f"s_bcnt1_i32_b64 s{sT}, s[{sMASK}:{sMASK+1}]")
    for j in range(1,nc):
        a(f"s_bcnt1_i32_b64 s{sT+1}, s[{sMASK+2*j}:{sMASK+2*j+1}]",f"s_add_u32 s{sT}, s{sT}, s{sT+1}")
    a(f"v_mov_b32 v{tA}, s{sT}",f"v_mov_b32 v{tz}, {CNT}",f"v_mov_b32 v{tOne}, 1")
    a("s_mov_b64 exec, 1")
    a(f"ds_add_rtn_u32 v{tB}, v{tz}, v{tA}")
    a("s_waitcnt lgkmcnt(0)")
    a("s_mov_b64 exec, -1")
    a(f"v_readfirstlane_b32 s{sT}, v{tB}")
    for j in range(nc):
        a(f"v_mbcnt_lo_u32_b32 v{tP}, s{sMASK+2*j}, 0")
        a(f"v_mbcnt_hi_u32_b32 v{tP}, s{sMASK+2*j+1}, v{tP}")
        fieldgen(j)
        a(f"v_add_u32 v{tP}, s{sT}, v{tP}")
        a(f"v_lshlrev_b32 v{tP}, 2, v{tP}")
        a(f"v_lshlrev_b32 v{tz}, 2, v{tB}")
        a(f"s_mov_b64 exec, s[{sMASK+2*j}:{sMASK+2*j+1}]")
        a(f"ds_write_b32 v{tP}, v{tA} offset:{LS}")
        a(f"ds_write_b32 v{tP}, v{tC} offset:{LE}")
        a(f"ds_write_b32 v{tP}, v{tB} offset:{LD}")
        a(f"ds_add_u32 v{tz}, v{tOne} offset:{DEG}")
        a("s_mov_b64 exec, -1")
        if j<nc-1:
            a(f"s_bcnt1_i32_b64 s{sT+1}, s[{sMASK+2*j}:{sMASK+2*j+1}]",f"s_add_u32 s{sT}, s{sT}, s{sT+1}")

def gen_k2():
    a=A()
    a("k2_main_kernel:")
    a("s_cmp_ge_u32 s2, 512","s_cbranch_scc1 K2_EXIT")
    a("s_load_dwordx4 s[4:7], s[0:1], 0")
    a("s_load_dwordx2 s[24:25], s[0:1], 64")
    a("s_load_dwordx2 s[28:29], s[0:1], 80")
    stamp(a,0)
    t0=TMP+4
    a(f"v_lshrrev_b32 v{t0}, 6, v0")
    a(f"v_and_b32 v{t0+1}, 63, v0")
    a(f"v_readfirstlane_b32 s{sWAVE}, v{t0}")
    L=t0+1
    a(f"s_mov_b32 s{sB}, s2")
    a(f"s_mul_i32 s{sSTART}, s2, 625",f"s_add_u32 s{sCOUNT}, s{sSTART}, {625+31}",f"s_add_u32 s{sSTART}, s{sSTART}, 31")
    a(f"s_lshr_b32 s{sSTART}, s{sSTART}, 5",f"s_lshr_b32 s{sCOUNT}, s{sCOUNT}, 5",f"s_sub_u32 s{sCOUNT}, s{sCOUNT}, s{sSTART}")
    n4=XF; tid16=XF+4; z=XF+5
    for k in range(4): a(f"v_mov_b32 v{n4+k}, 0x{NULLI:x}")
    a(f"v_lshlrev_b32 v{tid16}, 4, v0")
    list_fill(a,tid16,n4)
    a(f"v_lshlrev_b32 v{z}, 2, v0",f"v_mov_b32 v{z+1}, 0")
    a(f"ds_write_b32 v{z}, v{z+1}")
    e=XF+8; h=XF+9; u=XF+10; w=XF+11; x=XF+12
    a(f"v_and_b32 v{e}, 31, v{L}",f"v_lshrrev_b32 v{h}, 5, v{L}")
    a(f"v_lshrrev_b32 v{u}, 2, v{e}")
    a(f"s_movk_i32 s42, {XBLK}")
    a(f"v_mul_u32_u24 v{w}, s42, v{u}")
    a(f"v_and_b32 v{x}, 3, v{e}")
    a(f"v_lshl_add_u32 v{w}, v{x}, 8, v{w}")
    a(f"v_xor_b32 v{x}, v{x}, v{h}")
    a(f"v_lshl_add_u32 v{w}, v{x}, 4, v{w}")
    a(f"v_add_u32 v{vXA[0]}, {XR}, v{w}",f"v_xor_b32 v{vXA[1]}, 32, v{vXA[0]}")
    a(f"v_lshrrev_b32 v{x}, 4, v{e}",f"v_xor_b32 v{x}, v{x}, v{h}",f"v_lshlrev_b32 v{x}, 4, v{x}",f"v_lshl_add_u32 v{x}, v{e}, 5, v{x}",f"v_add_u32 v{vEA}, {ER}, v{x}")
    a(f"v_and_b32 v{x}, 3, v{u}",f"v_xor_b32 v{x}, v{x}, v{h}",f"v_lshlrev_b32 v{x}, 4, v{x}",f"v_lshl_add_u32 v{x}, v{e}, 6, v{x}",f"v_add_u32 v{vOA[0]}, {OR}, v{x}",f"v_xor_b32 v{vOA[1]}, 32, v{vOA[0]}")
    a(f"v_bfe_u32 v{x}, v{L}, 4, 1",f"v_lshlrev_b32 v{x}, 1, v{x}",f"v_bfe_u32 v{w}, v{L}, 1, 1",f"v_or_b32 v{x}, v{x}, v{w}")
    a(f"v_xor_b32 v{x}, v{x}, v{h}",f"v_lshlrev_b32 v{x}, 4, v{x}")
    a(f"v_and_b32 v{w}, 1, v{L}",f"v_lshl_add_u32 v{x}, v{w}, 3, v{x}")
    a(f"v_bfe_u32 v{w}, v{L}, 2, 2",f"v_lshl_add_u32 v{w}, v{h}, 2, v{w}",f"v_lshl_add_u32 v{x}, v{w}, 6, v{x}")
    a(f"v_add_u32 v{vOB[0]}, {OR}, v{x}",f"v_xor_b32 v{vOB[1]}, 32, v{vOB[0]}",f"v_add_u32 v{vOB[1]}, 512, v{vOB[1]}")
    a(f"v_lshrrev_b32 v{u}, 4, v{L}")
    a(f"v_and_b32 v{x}, 15, v{L}",f"v_xor_b32 v{x}, v{x}, v{u}",f"v_lshlrev_b32 v{X0+1}, 4, v{x}",f"v_mov_b32 v{X1+1}, v{X0+1}")
    a(f"s_lshl_b32 s42, s{sWAVE}, 5",f"s_add_u32 s42, s42, {LS}")
    a(f"v_lshl_add_u32 v{TMP+2}, v{u}, 2, s42")
    a(f"s_mul_i32 s{sXM0}, s{sWAVE}, {2*XBLK}",f"s_add_u32 s{sXM0}, s{sXM0}, {XR}")
    a(f"s_lshl_b32 s42, s{sWAVE}, 3")
    a(f"v_add_u32 v{x}, s42, v{u}")
    a(f"v_and_b32 v{w}, 8, v{x}",f"v_lshrrev_b32 v{w}, 1, v{w}",f"v_and_b32 v{x}, 0x13, v{x}",f"v_or_b32 v{x}, v{x}, v{w}")
    a(f"v_add_u32 v{w}, 8, v{x}")
    a(f"v_mov_b32 v{e}, 0x{NULLI:x}")
    for (reg,dstp) in ((x,X0),(w,X1)):
        a(f"v_cmp_gt_u32 vcc, s{sCOUNT}, v{reg}")
        a(f"v_add_u32 v{reg}, s{sSTART}, v{reg}")
        a("s_nop 0")
        a(f"v_cndmask_b32 v{dstp}, v{e}, v{reg}, vcc")
    a("s_waitcnt lgkmcnt(0)")
    srd(a,sX,4,10000,256)
    srd(a,sWS,28,WS_TOT)
    srd(a,sOUT,24,2560000)
    a(f"s_cmp_lg_u32 s{sWAVE}, 0","s_cbranch_scc1 K2_AUX1")
    srd(a,sAUX,6,160000,32)
    a(f"s_mov_b32 s{sAM0}, {ER}")
    a(f"v_and_b32 v{x}, 1, v{L}",f"v_xor_b32 v{x}, v{x}, v{h}",f"v_lshlrev_b32 v{AX+1}, 4, v{x}")
    a(f"v_lshrrev_b32 v{x}, 1, v{L}",f"v_lshlrev_b32 v{x}, 2, v{x}",f"v_add_u32 v{TMP+3}, {LE}, v{x}")
    a("s_branch K2_AUX2")
    a("K2_AUX1:")
    a(f"s_add_u32 s{sAUX}, s28, {WS_ID}",f"s_addc_u32 s{sAUX+1}, s29, 0",f"s_or_b32 s{sAUX+1}, s{sAUX+1}, 0x{64<<16:x}",f"s_mov_b32 s{sAUX+2}, 32",f"s_mov_b32 s{sAUX+3}, 0x00020000")
    a(f"s_min_u32 s42, s{sWAVE}, 2","s_sub_u32 s42, s42, 1")
    a(f"s_lshl_b32 s43, s42, 10",f"s_add_u32 s{sAM0}, s43, {OR}")
    a(f"v_and_b32 v{x}, 3, v{L}",f"v_xor_b32 v{x}, v{x}, v{u}",f"v_lshlrev_b32 v{AX+1}, 4, v{x}")
    a(f"s_lshl_b32 s43, s42, 6",f"s_add_u32 s43, s43, {LD}")
    a(f"v_lshrrev_b32 v{x}, 2, v{L}",f"v_lshl_add_u32 v{TMP+3}, v{x}, 2, s43")
    a("K2_AUX2:")
    ent=t0;
    Ls=XF+13
    a(f"v_mov_b32 v{Ls}, v{L}")
    a(f"s_mul_i32 s42, s{sB}, 5120",f"s_add_u32 s42, s42, {WS_LIST}","s_add_u32 s43, s42, 4096")
    a(f"buffer_load_dwordx4 {vr(ent,4)}, v{tid16}, s[{sWS}:{sWS+3}], s42 offen")
    a(f"buffer_load_dword v{ent+4}, v{z}, s[{sWS}:{sWS+3}], s43 offen")
    a(f"s_add_u32 m0, s{sXM0}, {3*XSLOT}","s_nop 0")
    a(f"buffer_load_dwordx4 v[{X0}:{X0+1}], s[{sX}:{sX+3}], 0 idxen offen lds")
    a(f"s_add_u32 m0, s{sXM0}, {3*XSLOT+XBLK}","s_nop 0")
    a(f"buffer_load_dwordx4 v[{X1}:{X1+1}], s[{sX}:{sX+3}], 0 idxen offen lds")
    wv=XF+14
    a(f"s_lshl_b32 s42, s{sWAVE}, 11",f"v_lshl_add_u32 v{wv}, v{Ls}, 4, s42")
    for s in range(8):
        a(f"s_mov_b32 s42, {WS_W1+(8+s)*8192}")
        for c in range(2): a(f"buffer_load_dwordx4 {vr(S+(c*8+s)*4,4)}, v{wv}, s[{sWS}:{sWS+3}], s42 offen offset:{c*1024}")
    bq=XF+15
    a(f"v_and_b32 v{bq}, 31, v{Ls}",f"s_lshl_b32 s42, s{sWAVE}, 8",f"v_lshl_add_u32 v{bq}, v{bq}, 2, s42",f"s_mov_b32 s42, {WS_B1}")
    a(f"buffer_load_dword v{ent+5}, v{bq}, s[{sWS}:{sWS+3}], s42 offen")
    a(f"buffer_load_dword v{ent+6}, v{bq}, s[{sWS}:{sWS+3}], s42 offen offset:128")
    for s in range(8):
        a(f"s_mov_b32 s42, {WS_W1+s*8192}")
        for c in range(2): a(f"buffer_load_dwordx4 {vr(W1S+(c*8+s)*4,4)}, v{wv}, s[{sWS}:{sWS+3}], s42 offen offset:{c*1024}")
    a(f"s_mov_b32 s42, {WS_W1+16*8192}")
    for c in range(2): a(f"buffer_load_dwordx4 {vr(W1E+4*c,4)}, v{wv}, s[{sWS}:{sWS+3}], s42 offen offset:{c*1024}")
    a("s_barrier")
    cb=XF+16; cb4=XF+17
    a("s_movk_i32 s42, 2000")
    a(f"v_lshrrev_b32 v{cb}, 2, v0",f"v_lshrrev_b32 v{cb4}, 4, v0",f"v_add_u32 v{cb4}, 64, v{cb4}")
    a(f"v_lshlrev_b32 v{XF+18}, 2, v{cb}",f"v_lshlrev_b32 v{XF+19}, 2, v{cb4}")
    a(f"v_mul_u32_u24 v{cb}, s42, v{cb}",f"v_mul_u32_u24 v{cb4}, s42, v{cb4}")
    a("s_waitcnt vmcnt(38)")
    stamp(a,1)
    for (er,fa,lab) in ((ent,XF+18,"A"),(ent+4,XF+19,"B")):
        a(f"v_cmp_eq_u32 vcc, -2, v{er}")
        a("s_and_saveexec_b64 s[42:43], vcc")
        a(f"v_mov_b32 v{XF+20}, 1")
        a(f"ds_write_b32 v{fa}, v{XF+20} offset:{FLG}")
        a("s_mov_b64 exec, s[42:43]")
    tP,tA,tB,tC,tOne,tz=XF+21,XF+22,XF+23,XF+24,XF+25,XF+26
    def mg(j): a(f"v_cmp_le_i32_e64 s[{sMASK+2*j}:{sMASK+2*j+1}], 0, v{ent+j}")
    def fg(j):
        a(f"v_and_b32 v{tA}, 0x3fff, v{ent+j}",f"v_bfe_u32 v{tB}, v{ent+j}, 14, 5",f"v_lshrrev_b32 v{tC}, 19, v{ent+j}",f"v_add_u32 v{tC}, v{tC}, v{cb if j<4 else cb4}")
    compact(a,5,mg,fg,tP,tA,tB,tC,tOne,tz)
    a("s_waitcnt vmcnt(36) lgkmcnt(0)")
    a("s_barrier")
    stamp(a,2)
    def read_n_flags(flags):
        a(f"v_mov_b32 v{tz}, {CNT}",f"ds_read_b32 v{tA}, v{tz}")
        if flags:
            a(f"v_and_b32 v{tB}, 63, v0",f"v_lshlrev_b32 v{tB}, 2, v{tB}")
            a(f"ds_read_b32 v{tC}, v{tB} offset:{FLG}",f"ds_read_b32 v{tP}, v{tB} offset:{FLG+256}")
        a("s_waitcnt lgkmcnt(0)")
        a(f"v_readfirstlane_b32 s{sN}, v{tA}")
        if flags:
            a(f"v_cmp_ne_u32_e64 s[{sF0}:{sF0+1}], 0, v{tC}")
            a(f"v_cmp_ne_u32_e64 s[42:43], 0, v{tP}")
            a("s_nop 0")
            a(f"s_and_b32 s{sF1}, s42, 0xffff")
            a(f"s_mov_b32 s{sHALF}, 0",f"s_mov_b32 s{sW2}, 0")
    read_n_flags(True)
    a(f"s_add_u32 s{sNT}, s{sN}, 31",f"s_lshr_b32 s{sNT}, s{sNT}, 5")
    dma_prologue(a)
    for s in range(8): a(f"ds_read_b128 {vr(XF+4*s,4)}, v{vXA[s&1]} offset:{3*XSLOT+(s>>1)*64}")
    a("s_waitcnt vmcnt(27)")
    for c in range(2):
        for i in range(16): a(f"v_mov_b32 v{T[c]+i}, v{ent+5+c}")
    a("s_waitcnt lgkmcnt(0)")
    for s in range(8):
        for c in range(2): a(mfma(T[c],XF+4*s,S+(c*8+s)*4,T[c]))
    a("s_nop 7","s_nop 3")
    for c in range(2):
        for j in range(8): a(f"v_cvt_pk_bf16_f32 v{QF+8*c+j}, v{T[c]+2*j}, v{T[c]+2*j+1}")
    for i in range(32): a(f"v_mov_b32 v{S+i}, 0")
    stamp(a,3)
    a("K2_PIPE:")
    a(f"s_cmp_eq_u32 s{sNT}, 0","s_cbranch_scc1 K2_AFTER")
    for i in range(8): a(f"v_mov_b32 v{H+i}, 0")
    for i in range(8): a(f"v_mov_b32 v{OB+i}, 0")
    a("s_waitcnt vmcnt(6)","s_barrier")
    stamp(a,4)
    mc=mchain(0,T[0])
    for (m,fr) in mc: a(frag_read(fr[0],fr[1],0)[0])
    for k,(m,fr) in enumerate(mc):
        a(f"s_waitcnt lgkmcnt({10-k})"); a(m)
    a("s_nop 7","s_nop 3")
    a(f"s_mov_b32 s{sREM}, s{sNT}")
    a("K2_LOOP:")
    body=[]
    for p in range(4):
        a(f"s_movk_i32 s{sRING}, {p*2048}")
        a(f"s_cmp_eq_u32 s{sREM}, 1","s_cbranch_scc1 K2_TAIL")
        f=Fifo()
        sa=slotA(p,f); sb=slotB(p,f)
        assert not f.q, f.q
        body+=sa+sb
        for x_ in sa+sb: a(x_)
        a(f"s_sub_u32 s{sREM}, s{sREM}, 1")
    a(f"v_add_u32 v{vLX}, 512, v{vLX}",f"v_add_u32 v{vLA}, 512, v{vLA}")
    a("s_branch K2_LOOP")
    errs=check(body+body[:200],"loop")
    a("K2_TAIL:")
    a(f"v_add_u32 v{TMP}, s{sRING}, v{vOB[0]}",f"v_add_u32 v{TMP+1}, s{sRING}, v{vOB[1]}")
    f=Fifo()
    ta=slotA(0,f,True)
    tb=slotB(0,f,True)
    for x_ in ta: a(x_)
    a(f"s_or_b32 s42, s{sF0}, s{sF0+1}",f"s_or_b32 s42, s42, s{sF1}","s_cmp_lg_u32 s42, 0","s_cbranch_scc1 K2_NOW2")
    def w2load():
        a(f"v_and_b32 v{TMP+4}, 63, v0",f"s_lshl_b32 s42, s{sWAVE}, 14",f"v_lshl_add_u32 v{TMP+4}, v{TMP+4}, 4, s42")
        for f_ in range(16):
            if f_%4==0: a(f"s_mov_b32 s42, {WS_W2+(f_//4)*4096}")
            a(f"buffer_load_dwordx4 {vr(W1S+4*f_,4)}, v{TMP+4}, s[{sWS}:{sWS+3}], s42 offen offset:{(f_%4)*1024}")
        a(f"s_mov_b32 s{sW2}, 1")
    w2load()
    a("K2_NOW2:")
    for x_ in tb: a(x_)
    a("s_nop 1")
    a(G(1,1))
    errs+=check(body[-150:]+ta+tb+["s_nop 1",G(1,1)],"tail")
    a("K2_AFTER:")
    stamp(a,5)
    a("s_waitcnt lgkmcnt(0)","s_barrier")
    a(f"s_or_b32 s42, s{sF0}, s{sF0+1}",f"s_or_b32 s42, s42, s{sF1}","s_cmp_lg_u32 s42, 0","s_cbranch_scc1 K2_SLOW")
    a(f"s_cmp_lg_u32 s{sW2}, 0","s_cbranch_scc1 K2_EPI")
    w2load()
    a("K2_EPI:")
    lane=TMP+5
    a(f"v_and_b32 v{lane}, 63, v0")
    a(f"v_lshrrev_b32 v{TMP+6}, 5, v{lane}",f"s_lshl_b32 s42, s{sWAVE}, 7",f"v_lshl_add_u32 v{TMP+6}, v{TMP+6}, 6, s42",f"s_mov_b32 s42, {WS_B2}")
    for k in range(4): a(f"buffer_load_dwordx4 {vr(H+4*k,4)}, v{TMP+6}, s[{sWS}:{sWS+3}], s42 offen offset:{16*k}")
    a(f"v_and_b32 v{TMP+7}, 31, v{lane}",f"v_lshlrev_b32 v{TMP+8}, 2, v{TMP+7}",f"ds_read_b32 v{TMP+9}, v{TMP+8} offset:{DEG}")
    a(f"s_mov_b32 s42, 0x{NEG_LN2:x}")
    a("s_nop 7")
    for i in range(32): a(f"v_mul_f32 v{S+i}, s42, v{S+i}")
    for j in range(16): a(f"v_cvt_pk_bf16_f32 v{U+j}, v{S+2*j}, v{S+2*j+1}")
    a(f"s_lshl_b32 s42, s{sWAVE}, 12",f"v_lshl_add_u32 v{TMP+8}, v{lane}, 4, s42")
    for k in range(4): a(f"ds_write_b128 v{TMP+8}, {vr(U+4*k,4)} offset:{EX+k*1024}")
    a("s_waitcnt lgkmcnt(0)","s_barrier")
    a(f"v_lshlrev_b32 v{TMP+8}, 4, v{lane}")
    FR=180
    for f_ in range(16): a(f"ds_read_b128 {vr(FR+4*f_,4)}, v{TMP+8} offset:{EX+f_*1024}")
    a(f"v_cvt_f32_u32 v{TMP+9}, v{TMP+9}")
    a("s_waitcnt vmcnt(0)")
    for i in range(16): a(f"v_mul_f32 v{U+i}, v{TMP+9}, v{H+i}")
    a("s_nop 0")
    for f_ in range(16):
        a(f"s_waitcnt lgkmcnt({15-f_})")
        a(mfma(U,W1S+4*f_,FR+4*f_,U))
    a(f"v_add_u32 v{TMP+8}, s{sSTART}, v{TMP+7}",f"v_lshlrev_b32 v{TMP+8}, 8, v{TMP+8}")
    a(f"v_lshrrev_b32 v{TMP+6}, 5, v{lane}",f"v_lshl_add_u32 v{TMP+8}, v{TMP+6}, 5, v{TMP+8}")
    a(f"s_lshl_b32 s42, s{sWAVE}, 6",f"v_add_u32 v{TMP+8}, s42, v{TMP+8}")
    a(f"v_cmp_gt_u32 vcc, s{sCOUNT}, v{TMP+7}",f"v_mov_b32 v{TMP+6}, 0x7f000000")
    a("s_nop 1")
    a(f"v_cndmask_b32 v{TMP+8}, v{TMP+6}, v{TMP+8}, vcc")
    a("s_nop 4")
    for j in range(8): a(f"v_cvt_pk_bf16_f32 v{S+j}, v{U+2*j}, v{U+2*j+1}")
    a(f"buffer_store_dwordx4 {vr(S,4)}, v{TMP+8}, s[{sOUT}:{sOUT+3}], 0 offen")
    a(f"buffer_store_dwordx4 {vr(S+4,4)}, v{TMP+8}, s[{sOUT}:{sOUT+3}], 0 offen offset:16")
    if PROF:
        stamp(a,6)
        a("s_waitcnt lgkmcnt(0)")
        a(f"s_lshl_b32 s42, s{sB}, 2",f"s_add_u32 s42, s42, s{sWAVE}","s_lshl_b32 s42, s42, 6",f"s_add_u32 s42, s42, {WS_PROF}")
        for i in range(7): a(f"v_mov_b32 v{S+8+i}, s{64+2*i}")
        a(f"v_mov_b32 v{S+15}, s{sNT}")
        a(f"v_mov_b32 v{TMP}, 0")
        a("s_mov_b64 exec, 1")
        a(f"buffer_store_dwordx4 {vr(S+8,4)}, v{TMP}, s[{sWS}:{sWS+3}], s42 offen")
        a(f"buffer_store_dwordx4 {vr(S+12,4)}, v{TMP}, s[{sWS}:{sWS+3}], s42 offen offset:16")
    a("s_waitcnt vmcnt(0)")
    a("s_endpgm")
    a("K2_SLOW:")
    a("s_waitcnt vmcnt(0)")
    cch=62
    a(f"s_ff1_i32_b64 s{cch}, s[{sF0}:{sF0+1}]",f"s_cmp_lg_u32 s{cch}, -1","s_cbranch_scc1 K2_SL1")
    a(f"s_ff1_i32_b32 s{cch}, s{sF1}",f"s_add_u32 s{cch}, s{cch}, 64")
    a("K2_SL1:")
    a(f"s_mul_i32 s63, s{cch}, 2000",f"s_mul_i32 s42, s{sHALF}, 1000","s_add_u32 s63, s63, s42")
    a(f"s_cmp_eq_u32 s{sHALF}, 0","s_cbranch_scc1 K2_SL2")
    a(f"s_cmp_ge_u32 s{cch}, 64","s_cbranch_scc1 K2_SL3")
    a(f"s_bitset0_b64 s[{sF0}:{sF0+1}], s{cch}","s_branch K2_SL2")
    a("K2_SL3:")
    a(f"s_sub_u32 s42, s{cch}, 64",f"s_bitset0_b32 s{sF1}, s42")
    a("K2_SL2:")
    a(f"s_xor_b32 s{sHALF}, s{sHALF}, 1")
    a("s_load_dwordx4 s[4:7], s[0:1], 16")
    for k in range(4): a(f"v_mov_b32 v{n4+k}, 0x{NULLI:x}")
    a(f"v_lshlrev_b32 v{tid16}, 4, v0")
    list_fill(a,tid16,n4)
    a(f"v_mov_b32 v{z}, {CNT}",f"v_mov_b32 v{z+1}, 0",f"ds_write_b32 v{z}, v{z+1}")
    a("s_waitcnt lgkmcnt(0)")
    srd(a,24,4,640000); srd(a,28,6,640000)
    a("s_lshl_b32 s42, s63, 2")
    dv=XF+8; sv=XF+12
    a(f"buffer_load_dwordx4 {vr(dv,4)}, v{tid16}, s[28:31], s42 offen")
    a(f"buffer_load_dwordx4 {vr(sv,4)}, v{tid16}, s[24:27], s42 offen")
    a("s_barrier")
    a(f"s_mov_b32 s42, {MAGIC}","s_movk_i32 s43, 625")
    a("s_waitcnt vmcnt(0)")
    bk=XF+16
    for j in range(4):
        a(f"v_mul_u32_u24 v{bk+j}, s42, v{dv+j}",f"v_lshrrev_b32 v{bk+j}, 23, v{bk+j}")
    a("v_cmp_gt_u32 vcc, 250, v0","s_nop 0","s_mov_b64 s[54:55], vcc")
    def mg2(j):
        a(f"v_cmp_eq_u32_e64 s[{sMASK+2*j}:{sMASK+2*j+1}], s{sB}, v{bk+j}")
        a("s_nop 0")
        a(f"s_and_b64 s[{sMASK+2*j}:{sMASK+2*j+1}], s[{sMASK+2*j}:{sMASK+2*j+1}], s[54:55]")
    def fg2(j):
        a(f"v_mov_b32 v{tA}, v{sv+j}",f"v_subrev_u32 v{tB}, s{sSTART}, v{dv+j}",f"v_lshlrev_b32 v{tC}, 2, v0",f"v_add_u32 v{tC}, s63, v{tC}")
        if j: a(f"v_add_u32 v{tC}, {j}, v{tC}")
    compact(a,4,mg2,fg2,tP,tA,tB,tC,tOne,tz)
    a("s_waitcnt lgkmcnt(0)","s_barrier")
    read_n_flags(False)
    a(f"s_add_u32 s{sNT}, s{sN}, 31",f"s_lshr_b32 s{sNT}, s{sNT}, 5")
    dma_prologue(a)
    a("s_branch K2_PIPE")
    a("K2_EXIT:")
    a("s_endpgm")
    print("hazard errors:",errs,file=sys.stderr)
    return a

def kd(name,vgpr,sgpr=96):
    return f""".amdhsa_kernel {name}
  .amdhsa_next_free_vgpr {vgpr}
  .amdhsa_next_free_sgpr {sgpr}
  .amdhsa_accum_offset {(vgpr+3)//4*4}
  .amdhsa_group_segment_fixed_size 0
  .amdhsa_kernarg_size 88
  .amdhsa_user_sgpr_count 2
  .amdhsa_user_sgpr_kernarg_segment_ptr 1
  .amdhsa_system_sgpr_workgroup_id_x 1
.end_amdhsa_kernel
"""
HDR=open("standalone__edge_featured_mpnn_mpnn__graph.s.ref").read().split("; Override")[0]
def full():
    o=HDR
    o+=f"; @launch kernel=k1_bin_prep_kernel grid=({NCH+26},1,1) block=(512,1,1) lds=34880\n"
    o+=f"; @launch kernel=k2_main_kernel grid=(512,1,1) block=(256,1,1) lds={LDS2}\n"
    o+='.amdgcn_target "amdgcn-amd-amdhsa--gfx950"\n.text\n'
    for nm,g in (("k1_bin_prep_kernel",gen_k1()),("k2_main_kernel",gen_k2())):
        o+=f".globl {nm}\n.p2align 8\n.type {nm},@function\n"+g.text()
    o+='.section .rodata,"a"\n'
    o+=".p2align 6\n"+kd("k1_bin_prep_kernel",32,40)
    o+=".p2align 6\n"+kd("k2_main_kernel",256,96)
    return o
if __name__=="__main__":
    open(sys.argv[1],"w").write(full())
```

```python
from gen import *
WS_P=WS_END
NG=157
K1N=NCH+NG+18
LDS1=81920
WS_TOT4=WS_P+5120000
STORE_MOD=""

def gen_k1(store_mod="", list_mod="", srcmask=None, prof=0):
    a=A()
    a("k1_bin_prep_kernel:")
    a(f"s_cmp_ge_u32 s2, {K1N}")
    a("s_cbranch_scc1 K1_EXIT")
    a("s_load_dwordx2 s[4:5], s[0:1], 80")
    if prof: a("s_memrealtime s[36:37]")
    a(f"s_cmp_ge_u32 s2, {NCH}")
    a("s_cbranch_scc1 K1_NOBIN")
    a("s_load_dwordx4 s[8:11], s[0:1], 16")
    a("v_lshlrev_b32 v1, 4, v0")
    a("v_mov_b32 v4, -1","v_mov_b32 v5, -1","v_mov_b32 v6, -1","v_mov_b32 v7, -1")
    a("v_lshlrev_b32 v2, 2, v0","v_mov_b32 v3, 0")
    for i in range(4): a(f"ds_write_b128 v1, v[4:7] offset:{i*8192}")
    a("ds_write_b32 v2, v3 offset:32768")
    a("s_mul_i32 s3, s2, 8000")
    a("s_waitcnt lgkmcnt(0)")
    a("s_add_u32 s12, s8, s3","s_addc_u32 s13, s9, 0","s_mov_b32 s14, 8000","s_mov_b32 s15, 0x00020000")
    a("s_add_u32 s16, s10, s3","s_addc_u32 s17, s11, 0","s_mov_b32 s18, 8000","s_mov_b32 s19, 0x00020000")
    a("buffer_load_dwordx4 v[8:11], v1, s[16:19], 0 offen")
    a("buffer_load_dwordx4 v[12:15], v1, s[12:15], 0 offen")
    srd(a,20,4,WS_END)
    a(f"s_mov_b32 s24, {MAGIC}","s_movk_i32 s25, 625")
    a("s_barrier")
    a("v_cmp_gt_u32 vcc, 500, v0")
    a("s_and_saveexec_b64 s[26:27], vcc")
    a("s_cbranch_execz K1_BIN_SKIP")
    a("v_mov_b32 v3, 1")
    a("s_waitcnt vmcnt(1)")
    for j in range(4): a(f"v_mul_u32_u24 v{16+j}, s24, v{8+j}")
    for j in range(4): a(f"v_lshrrev_b32 v{16+j}, 23, v{16+j}")
    for j in range(4): a(f"v_lshlrev_b32 v{20+j}, 2, v{16+j}")
    for j in range(4): a(f"ds_add_rtn_u32 v{24+j}, v{20+j}, v3 offset:32768")
    for j in range(4): a(f"v_mad_u32_u24 v{28+j}, v{16+j}, s25, 31")
    for j in range(4): a(f"v_lshrrev_b32 v{28+j}, 5, v{28+j}")
    for j in range(4): a(f"v_sub_u32 v{28+j}, v{8+j}, v{28+j}")
    a("v_lshlrev_b32 v2, 21, v0")
    a("s_waitcnt vmcnt(0)")
    if srcmask is not None:
        for j in range(4): a(f"v_and_b32 v{12+j}, {srcmask}, v{12+j}")
    for j in range(4): a(f"v_lshl_or_b32 v{28+j}, v{28+j}, 14, v{12+j}")
    for j in range(4):
        a(f"v_or_b32 v{28+j}, v{28+j}, v2")
        if j: a(f"v_add_u32 v{28+j}, {j<<19}, v{28+j}")
    for j in range(4): a(f"v_lshlrev_b32 v{16+j}, 6, v{16+j}")
    a("v_mov_b32 v3, 34816")
    a("s_waitcnt lgkmcnt(0)")
    for j in range(4):
        a(f"v_lshl_add_u32 v{16+j}, v{24+j}, 2, v{16+j}")
        a(f"v_cmp_gt_u32 vcc, {CAP}, v{24+j}")
        a("s_nop 1")
        a(f"v_cndmask_b32 v{16+j}, v3, v{16+j}, vcc")
        a(f"ds_write_b32 v{16+j}, v{28+j}")
    a("K1_BIN_SKIP:")
    a("s_mov_b64 exec, s[26:27]")
    a("s_waitcnt lgkmcnt(0)")
    a("s_barrier")
    a("v_lshrrev_b32 v2, 2, v0")
    a("v_lshlrev_b32 v3, 2, v2")
    for i in range(4):
        a(f"ds_read_b128 v[{8+4*i}:{11+4*i}], v1 offset:{i*8192}")
        a(f"ds_read_b32 v{24+i}, v3 offset:{32768+i*512}")
    a("s_movk_i32 s25, 5120")
    a("v_mul_u32_u24 v2, s25, v2")
    a("v_and_b32 v3, 3, v0")
    a("v_lshl_add_u32 v2, v3, 4, v2")
    a("s_lshl_b32 s3, s2, 6")
    a(f"s_add_u32 s3, s3, {WS_LIST}")
    a("v_mov_b32 v4, -2")
    for i in range(4):
        a(f"s_waitcnt lgkmcnt({6-2*i})")
        a(f"v_cmp_lt_u32 vcc, {CAP}, v{24+i}")
        a("s_nop 1")
        for k in range(4): a(f"v_cndmask_b32 v{8+4*i+k}, v{8+4*i+k}, v4, vcc")
        a(f"buffer_store_dwordx4 v[{8+4*i}:{11+4*i}], v2, s[20:23], s3 offen{list_mod}")
        if i<3: a(f"s_add_u32 s3, s3, {128*5120}")
    a("s_endpgm")
    a("K1_NOBIN:")
    a(f"s_cmp_ge_u32 s2, {NCH+NG}")
    a("s_cbranch_scc1 K1_PREP")
    a("s_load_dwordx2 s[8:9], s[0:1], 0")
    a("s_load_dwordx2 s[10:11], s[0:1], 32")
    a("v_and_b32 v1, 63, v0")
    a("v_lshrrev_b32 v2, 6, v0")
    a(f"s_sub_u32 s3, s2, {NCH}")
    a("v_readfirstlane_b32 s6, v2")
    a("s_lshl_b32 s3, s3, 6")
    a("v_lshrrev_b32 v3, 4, v1")
    a("s_lshl_b32 s7, s6, 3")
    a("v_add_u32 v4, s7, v3")
    a("v_add_u32 v5, 4, v4")
    a("v_and_b32 v6, 15, v1")
    for r in (4,5):
        a(f"v_and_b32 v7, 15, v{r}",f"v_xor_b32 v7, v7, v6",f"v_add_u32 v{r}, s3, v{r}",f"v_lshlrev_b32 v{r}, 8, v{r}",f"v_lshl_add_u32 v{r}, v7, 4, v{r}")
    a("v_lshrrev_b32 v6, 5, v1")
    a("v_and_b32 v7, 31, v1")
    a("v_lshlrev_b32 v8, 2, v6","v_xor_b32 v7, v7, v8","v_lshlrev_b32 v7, 4, v7")
    a("v_lshl_add_u32 v8, v6, 9, v7")
    a("v_xor_b32 v9, 128, v8")
    a("s_waitcnt lgkmcnt(0)")
    srd(a,12,8,2560000)
    srd(a,16,10,128*512)
    a("s_add_u32 s20, s4, %d"%WS_P,"s_addc_u32 s21, s5, 0","s_mov_b32 s22, 5120000","s_mov_b32 s23, 0x00020000")
    a("s_lshl_b32 s7, s6, 11","s_add_u32 m0, s7, 65536","s_lshl_b32 s24, s6, 13")
    a("buffer_load_dwordx4 v4, s[12:15], 0 offen lds")
    a("s_add_u32 m0, s7, 66560","s_nop 0")
    a("buffer_load_dwordx4 v5, s[12:15], 0 offen lds")
    for j in range(8):
        a(f"s_add_u32 s25, s24, {j*1024}","s_mov_b32 m0, s25","s_nop 0")
        a(f"buffer_load_dwordx4 v{8+(j&1)}, s[16:19], s25 offen lds")
    a("v_bfe_u32 v10, v1, 2, 2")
    a("v_lshl_add_u32 v11, v6, 3, v10")
    a("v_lshlrev_b32 v11, 9, v11")
    a("v_and_b32 v12, 1, v1","v_lshlrev_b32 v12, 1, v12","v_bfe_u32 v13, v1, 4, 1","v_or_b32 v12, v12, v13")
    a("s_lshl_b32 s7, s6, 2","v_or_b32 v12, s7, v12")
    a("v_lshlrev_b32 v10, 2, v10","v_xor_b32 v12, v12, v10")
    a("v_lshl_add_u32 v11, v12, 4, v11")
    a("v_bfe_u32 v13, v1, 1, 1","v_lshl_add_u32 v11, v13, 3, v11")
    a("v_and_b32 v12, 31, v1","v_and_b32 v13, 15, v1","v_xor_b32 v13, v13, v6","v_lshlrev_b32 v13, 4, v13")
    a("v_lshl_add_u32 v13, v12, 8, v13","v_add_u32 v16, 0x10000, v13")
    for s in range(1,8): a(f"v_xor_b32 v{16+s}, {s<<5}, v16")
    a("v_add_u32 v14, s3, v12","v_lshlrev_b32 v14, 9, v14","v_lshl_add_u32 v14, v6, 5, v14","s_lshl_b32 s7, s6, 6","v_add_u32 v14, s7, v14")
    a(f"s_mov_b32 s7, 0x{NEG_LOG2E:x}")
    WF=24; XFa=56; D0=120
    a("s_waitcnt vmcnt(0)","s_barrier")
    for s in range(8):
        for q in range(2): a(f"ds_read_b64_tr_b16 v[{WF+4*s+2*q}:{WF+4*s+2*q+1}], v11 offset:{s*8192+q*2048}")
        a(f"ds_read_b128 v[{XFa+4*s}:{XFa+4*s+3}], v{16+s}")
    for s in range(4):
        a(f"ds_read_b128 v[{XFa+32+4*s}:{XFa+32+4*s+3}], v{16+s} offset:8192")
    for s in range(8):
        n=3*(7-s)+4
        a(f"s_waitcnt lgkmcnt({min(n,15)})")
        if s==4:
            pass
        a(f"v_mfma_f32_32x32x16_bf16 v[{D0}:{D0+15}], v[{WF+4*s}:{WF+4*s+3}], v[{XFa+4*s}:{XFa+4*s+3}], "+("0" if s==0 else f"v[{D0}:{D0+15}]"))
    for s in range(4,8):
        a(f"ds_read_b128 v[{XFa+32+4*s}:{XFa+32+4*s+3}], v{16+s} offset:8192")
    for s in range(8):
        if s==0: a("s_waitcnt lgkmcnt(4)")
        if s>=4: a(f"s_waitcnt lgkmcnt({7-s})")
        a(f"v_mfma_f32_32x32x16_bf16 v[{D0+16}:{D0+31}], v[{WF+4*s}:{WF+4*s+3}], v[{XFa+32+4*s}:{XFa+32+4*s+3}], "+("0" if s==0 else f"v[{D0+16}:{D0+31}]"))
    for tt in range(2):
        if tt==1: a("s_nop 7","s_nop 3")
        for i in range(16): a(f"v_mul_f32 v{D0+16*tt+i}, s7, v{D0+16*tt+i}")
        for j in range(8): a(f"v_cvt_pk_bf16_f32 v{XFa+8*tt+j}, v{D0+16*tt+2*j}, v{D0+16*tt+2*j+1}")
        if tt==1: a("v_add_u32 v14, 0x4000, v14")
        a(f"buffer_store_dwordx4 v[{XFa+8*tt}:{XFa+8*tt+3}], v14, s[20:23], 0 offen{store_mod}")
        a(f"buffer_store_dwordx4 v[{XFa+8*tt+4}:{XFa+8*tt+7}], v14, s[20:23], 0 offen offset:16{store_mod}")
    a("s_endpgm")
    a("K1_PREP:")
    a(f"s_sub_u32 s3, s2, {NCH+NG}")
    a("s_load_dwordx4 s[8:11], s[0:1], 32")
    a("s_load_dwordx4 s[12:15], s[0:1], 48")
    a("v_and_b32 v1, 63, v0")
    a("v_lshrrev_b32 v2, 5, v1")
    a("v_and_b32 v3, 31, v0")
    a("s_waitcnt lgkmcnt(0)")
    srd(a,20,4,WS_END)
    a("s_cmp_ge_u32 s3, 9")
    a("s_cbranch_scc1 K1_PREP2")
    a("s_add_u32 s3, s3, 8")
    srd(a,16,8,272*256*2)
    a("v_lshrrev_b32 v4, 6, v0")
    a("v_lshl_add_u32 v4, v4, 5, v3")
    a("v_lshlrev_b32 v4, 1, v4")
    a("v_lshl_add_u32 v4, v2, 12, v4")
    a("s_lshl_b32 s6, s3, 13")
    for j in range(8): a(f"buffer_load_ushort v{8+j}, v4, s[16:19], s6 offen offset:{j*512}")
    a(f"s_mov_b32 s7, 0x{NEG_LOG2E:x}")
    a("v_lshlrev_b32 v5, 4, v0")
    a("s_waitcnt vmcnt(0)")
    for j in range(8): a(f"v_lshlrev_b32 v{8+j}, 16, v{8+j}")
    for j in range(8): a(f"v_mul_f32 v{8+j}, s7, v{8+j}")
    for j in range(4): a(f"v_cvt_pk_bf16_f32 v{16+j}, v{8+2*j}, v{9+2*j}")
    a(f"buffer_store_dwordx4 v[16:19], v5, s[20:23], s6 offen")
    a("s_endpgm")
    a("K1_PREP2:")
    a("s_cmp_ge_u32 s3, 17")
    a("s_cbranch_scc1 K1_PREP3")
    srd(a,16,12,256*128*2)
    a("s_sub_u32 s3, s3, 9")
    a("v_lshrrev_b32 v4, 8, v0")
    a("s_lshl_b32 s6, s3, 1")
    a("v_add_u32 v4, s6, v4")
    a("v_bfe_u32 v5, v0, 6, 2")
    a("v_bfe_u32 v6, v3, 2, 1","v_lshlrev_b32 v6, 4, v6")
    a("v_lshrrev_b32 v7, 3, v3","v_lshl_add_u32 v6, v7, 2, v6")
    a("v_and_b32 v7, 3, v3","v_add_u32 v6, v6, v7")
    a("v_lshl_add_u32 v6, v5, 5, v6")
    a("v_lshlrev_b32 v6, 1, v6")
    a("v_lshl_add_u32 v6, v4, 12, v6")
    a("v_lshl_add_u32 v6, v2, 10, v6")
    for q in range(2):
        for r in range(4): a(f"buffer_load_ushort v{8+4*q+r}, v6, s[16:19], 0 offen offset:{(8*q+r)*256}")
    a("v_lshl_add_u32 v5, v5, 4, v4","v_lshlrev_b32 v5, 10, v5","v_lshl_add_u32 v5, v1, 4, v5")
    a(f"s_mov_b32 s6, {WS_W2}")
    a("s_waitcnt vmcnt(0)")
    for j in range(4): a(f"v_lshl_or_b32 v{16+j}, v{9+2*j}, 16, v{8+2*j}")
    a(f"buffer_store_dwordx4 v[16:19], v5, s[20:23], s6 offen")
    a("s_endpgm")
    a("K1_PREP3:")
    srd(a,16,10,512)
    srd(a,24,14,256)
    a("v_lshlrev_b32 v4, 1, v0","v_lshlrev_b32 v5, 2, v0")
    a("buffer_load_ushort v8, v4, s[16:19], 0 offen")
    a("buffer_load_ushort v9, v4, s[24:27], 0 offen")
    a("v_lshrrev_b32 v6, 4, v0","v_and_b32 v7, 15, v0","v_lshlrev_b32 v7, 1, v7")
    a("v_mov_b32 v10, 0","v_mov_b32 v11, 0x3f80","v_mov_b32 v12, 0x3f800000")
    a("v_cmp_eq_u32 vcc, v6, v7","s_nop 1","v_cndmask_b32 v10, v10, v11, vcc")
    a("v_add_u32 v7, 1, v7")
    a("v_cmp_eq_u32 vcc, v6, v7","s_nop 1","v_cndmask_b32 v10, v10, v12, vcc")
    a(f"s_mov_b32 s6, {WS_ID}")
    a("buffer_store_dword v10, v5, s[20:23], s6 offen")
    a(f"s_mov_b32 s7, 0x{NEG_LOG2E:x}")
    a("s_waitcnt vmcnt(1)")
    a("v_lshlrev_b32 v8, 16, v8","v_lshlrev_b32 v9, 16, v9","v_mul_f32 v8, s7, v8")
    a("v_cmp_gt_u32 vcc, 256, v0","s_and_saveexec_b64 s[28:29], vcc","s_cbranch_execz K1_EXIT")
    a(f"s_mov_b32 s6, {WS_B1}")
    a("buffer_store_dword v8, v5, s[20:23], s6 offen")
    a("v_cmp_gt_u32 vcc, 128, v0","s_and_saveexec_b64 s[28:29], vcc","s_cbranch_execz K1_EXIT")
    a(f"s_mov_b32 s6, {WS_B2}")
    a("buffer_store_dword v9, v5, s[20:23], s6 offen")
    a("K1_EXIT:")
    a("s_endpgm")
    if prof:
        n=len(a.l)
        for i in range(n-1):
            if a.l[i]=="s_endpgm": a.l[i]="s_branch K1_PEND"
        a("K1_PEND:")
        a("s_waitcnt vmcnt(0)")
        a("s_memrealtime s[38:39]")
        a("s_mov_b64 exec, 1")
        a(f"s_add_u32 s32, s4, {WS_TOT4+512*4*64}","s_addc_u32 s33, s5, 0","s_mov_b32 s34, 65536","s_mov_b32 s35, 0x00020000")
        a("v_lshrrev_b32 v1, 6, v0","s_lshl_b32 s3, s2, 3","v_add_u32 v1, s3, v1","v_lshlrev_b32 v1, 3, v1")
        a("s_waitcnt lgkmcnt(0)")
        a("v_mov_b32 v2, s36","v_mov_b32 v3, s38")
        a("buffer_store_dwordx2 v[2:3], v1, s[32:35], 0 offen")
        a("s_endpgm")
    return a
```

```python
import sys
from gen import *
from gen2 import mfma, Fifo, regs_of, check, with_waits
from g4k1 import WS_P, WS_TOT4

DEG=0; CNT=128; FLG=256
LS=1024; LE=6656; LD=12288
PR=17920; PSLOT=16384
ER=PR+3*PSLOT; OR=ER+3*1024; LDS2=OR+3*2048
XO=PR+2*PSLOT; XBLK=1088
EX=1024
PI=[2,4,6,8]; AX=10
vLA=1; vPA=[12,13,14,15]; vEA=16; vOA=[17,18]; vOB=[19,20]; vLX=21
W1E=24; QF=32; ID=48; ONE=56; S=60; U=[92,108]; H=124; EF=132; OA=136; OB=144; PA=152; T=[160,176,192]
XF=208; WD=60; TMP=244
sX=8; sAUX=12; sWS=16; sOUT=20
sWAVE=32; sB=33; sSTART=34; sCOUNT=35; sN=36; sNT=37; sREM=38; sPM0=39
sMASK=44
sF0=56; sF1=58; sHALF=59; sW2=60; sT=61
sAM=[80,81,82]; sP=84; sAP=[88,89,90]

CFG=dict(GB=2,M=[7,12,23,29,36],O=18,G0=50,D=[14,20,26,33,41],IDX=40)

def G(c,s2): return mfma(S+16*c,H+4*s2,OB+4*s2,S+16*c)
def Rstream(tr,ur):
    u=U[ur]; t=T[tr]
    rc=lambda k:[f"v_rcp_f32 v{u+i}, v{u+i}" for i in range(4*k,4*k+4)]
    mu=lambda k:[f"v_mul_f32 v{u+i}, v{t+i}, v{u+i}" for i in range(4*k,4*k+4)]
    cv=lambda j:f"v_cvt_pk_bf16_f32 v{H+j}, v{u+2*j}, v{u+2*j+1}"
    return rc(0)+rc(1)+mu(0)+rc(2)+mu(1)+[cv(0),cv(1)]+rc(3)+mu(2)+[cv(2),cv(3)]+mu(3)+[cv(4),cv(5),cv(6),cv(7)]
def Xstream(tx,ux): return [f"v_exp_f32 v{U[ux]+i}, v{T[tx]+i}" for i in range(16)]
def mchain(c,td):
    t=T[td]
    return [mfma(t,PA,ID,None), mfma(t,PA+4,ID+4,t), mfma(t,EF,W1E+4*c,t), mfma(t,OA,QF+(c*2)*4,t), mfma(t,OA+4,QF+(c*2+1)*4,t)]
def rd_pa(a_,c,ring): return ("ds",f"ds_read_b128 {vr(PA+4*a_,4)}, v{vPA[c*2+a_]} offset:{ring*PSLOT}",[PA+4*a_+k for k in range(4)])
def rd_ef(ring): return ("ds",f"ds_read_b128 {vr(EF,4)}, v{vEA} offset:{ring*1024}",[EF+k for k in range(4)])
def rd_oa(u,ring): return ("ds",f"ds_read_b128 {vr(OA+4*u,4)}, v{vOA[u]} offset:{ring*2048}",[OA+4*u+k for k in range(4)])
def rd_ob(s2,q,ring): return ("ds",f"ds_read_b64_tr_b16 {vr(OB+4*s2+2*q,2)}, v{vOB[q]} offset:{ring*2048+s2*1024}",[OB+4*s2+2*q,OB+4*s2+2*q+1])
def rd_idx(tile):
    l=[("ds",f"ds_read_b32 v{AX}, v{vLA} offset:{(tile-1)*128}",[AX])]
    for b in range(4): l.append(("ds",f"ds_read_b32 v{PI[b]}, v{vLX} offset:{tile*128+b*32}",[PI[b]]))
    return l
def merge(valu,events):
    out=[]; n=len(valu)
    ev=sorted([(min(p,n),i,l) for i,(p,l) in enumerate(events)],key=lambda e:(e[0],e[1])); k=0
    for i in range(n+1):
        while k<len(ev) and ev[k][0]<=i:
            out+=ev[k][2]; k+=1
        if i<n: out.append(valu[i])
    return out

def slot(p,c,fifo,tag,X=True,R=True,M=True,Gp=True,idx_tile=None):
    C=CFG
    tx=(2*p+1+c)%3; ux=1-c; tr=(2*p+c)%3; ur=c; td=(2*p+2+c)%3
    valu=(Xstream(tx,ux) if X else [])+(Rstream(tr,ur) if R else [])
    sh=(lambda pos: pos) if X else (lambda pos: pos if pos<16 else pos-16)
    short=not R
    ev=[]
    if Gp:
        l=[G(1-c,1)]
        if c==0: l+=[rd_ob(s2,q,p) for s2 in range(2) for q in range(2)]
        ev.append((sh(C['GB']),l))
    if M:
        mc=mchain(c,td)
        for k in range(5):
            l=[]
            if c==1 and k==0:
                l+=[f"s_cbranch_vccnz K2_W{tag}","s_waitcnt vmcnt(4)",f"K2_W{tag}:","s_waitcnt vmcnt(5)","s_barrier"]
            l.append(mc[k])
            if c==0:
                if k<2: l.append(rd_pa(k,1,(p+1)%3))
                if k==4 : pass
            else:
                r2=(p+2)%3
                l.append([rd_pa(0,0,r2),rd_pa(1,0,r2),rd_ef(r2),rd_oa(0,r2),rd_oa(1,r2)][k])
            ev.append((C['M'][k],l))
        if c==0:
            ev.append((C['IDX'],rd_idx(p+4 if idx_tile is None else idx_tile)))
        else:
            r1=(p+1)%3
            dm=[(f"s_mov_b32 m0, s{sAM[p]}",f"buffer_load_dwordx4 v[{AX}:{AX+1}], s[{sAUX}:{sAUX+3}], 0 idxen offen lds")]
            for b in range(4):
                dm.append((f"s_add_u32 m0, s{sPM0}, {r1*PSLOT+b*1024}",f"buffer_load_dwordx4 v[{PI[b]}:{PI[b]+1}], s[{sP}:{sP+3}], 0 idxen offen lds"))
            for k,(m,d) in enumerate(dm):
                if short: ev.append((C['D'][k]+100,[m,"s_nop 0",d]))
                else:
                    ev.append((C['D'][k],[m])); ev.append((C['D'][k]+1,[d]))
    if X:
        o=mfma(U[ux],ONE,ONE,U[ux])
        ev.append((C['O'],(["s_nop 1"] if short else [])+[o]))
    if R: ev.append((sh(C['G0']),[G(c,0)]))
    return with_waits(merge(valu,ev),fifo)
```

```python
import sys
from gen import *
from g4k1 import *
from g4k2 import *
import g4k2, g4k1

PROF=int(sys.argv[2]) if len(sys.argv)>2 else 0
OPT=eval(sys.argv[3]) if len(sys.argv)>3 else {}
CFG.update(OPT.get('cfg',{}))
PRIO=OPT.get('prio',[])
WS_PROF=WS_TOT4
WS_TOT=WS_TOT4+512*4*64

def stamp(a,i):
    if not PROF: return
    if PROF==1: a(f"s_memtime s[{64+2*i}:{65+2*i}]")
    else: a(f"s_memrealtime s[{64+2*i}:{65+2*i}]")
    if PROF==2 and i==4: a("s_memtime s[92:93]")
    if PROF==2 and i==5: a("s_memtime s[94:95]")

G1P=[T[2]+2*k for k in range(5)]
G2P=[T[1]+2*k for k in range(5)]
def dma_group(a,g,prs,ax,wait=True):
    a(f"s_mov_b32 m0, s{sAP[g]}")
    if wait is not True and wait is not None: a(f"s_waitcnt lgkmcnt({wait})")
    else: a("s_nop 0")
    a(f"buffer_load_dwordx4 v[{ax}:{ax+1}], s[{sAUX}:{sAUX+3}], 0 idxen offen lds")
    for b in range(4):
        a(f"s_add_u32 m0, s{sPM0}, {g*PSLOT+b*1024}","s_nop 0")
        a(f"buffer_load_dwordx4 v[{prs[b]}:{prs[b]+1}], s[{sP}:{sP+3}], 0 idxen offen lds")
def idx_group(a,g,prs,ax):
    if g<2: a(f"ds_read_b32 v{ax}, v{TMP+1} offset:{g*128}")
    else: a(f"ds_read_b32 v{ax}, v{TMP+3} offset:128")
    for b in range(4): a(f"ds_read_b32 v{prs[b]}, v{TMP+2} offset:{g*128+b*32}")
def list_fill(a,tid16,vnull4):
    for i in range(4): a(f"ds_write_b128 v{tid16}, {vr(vnull4,4)} offset:{LS+i*4096}")
    a(f"v_cmp_gt_u32 vcc, 512, v{tid16}")
    a("s_and_saveexec_b64 s[42:43], vcc")
    a(f"ds_write_b128 v{tid16}, {vr(vnull4,4)} offset:{LS+16384}")
    a("s_mov_b64 exec, s[42:43]")

def compact(a,nc,maskgen,fieldgen,tP,tA,tB,tC,tOne,tz):
    for j in range(nc): maskgen(j)
    a("s_nop 0")
    a(f"s_bcnt1_i32_b64 s{sT}, s[{sMASK}:{sMASK+1}]")
    for j in range(1,nc):
        a(f"s_bcnt1_i32_b64 s{sT+1}, s[{sMASK+2*j}:{sMASK+2*j+1}]",f"s_add_u32 s{sT}, s{sT}, s{sT+1}")
    a(f"v_mov_b32 v{tA}, s{sT}",f"v_mov_b32 v{tz}, {CNT}",f"v_mov_b32 v{tOne}, 1")
    a("s_mov_b64 exec, 1")
    a(f"ds_add_rtn_u32 v{tB}, v{tz}, v{tA}")
    a("s_waitcnt lgkmcnt(0)")
    a("s_mov_b64 exec, -1")
    a(f"v_readfirstlane_b32 s{sT}, v{tB}")
    for j in range(nc):
        a(f"v_mbcnt_lo_u32_b32 v{tP}, s{sMASK+2*j}, 0")
        a(f"v_mbcnt_hi_u32_b32 v{tP}, s{sMASK+2*j+1}, v{tP}")
        fieldgen(j)
        a(f"v_add_u32 v{tP}, s{sT}, v{tP}")
        a(f"v_lshlrev_b32 v{tP}, 2, v{tP}")
        a(f"v_lshlrev_b32 v{tz}, 2, v{tB}")
        a(f"s_mov_b64 exec, s[{sMASK+2*j}:{sMASK+2*j+1}]")
        a(f"ds_write_b32 v{tP}, v{tA} offset:{LS}")
        a(f"ds_write_b32 v{tP}, v{tC} offset:{LE}")
        a(f"ds_write_b32 v{tP}, v{tB} offset:{LD}")
        a(f"ds_add_u32 v{tz}, v{tOne} offset:{DEG}")
        a("s_mov_b64 exec, -1")
        if j<nc-1:
            a(f"s_bcnt1_i32_b64 s{sT+1}, s[{sMASK+2*j}:{sMASK+2*j+1}]",f"s_add_u32 s{sT}, s{sT}, s{sT+1}")

W2Q=[XF+4*k for k in range(9)]+[PA,PA+4,EF,OA,OA+4,W1E,W1E+4]
FRQ=[S+4*k for k in range(8)]+[T[1]+4*k for k in range(4)]+[T[2]+4*k for k in range(4)]

def gen_k2():
    a=A()
    a("k2_main_kernel:")
    a("s_cmp_ge_u32 s2, 512","s_cbranch_scc1 K2_EXIT")
    a("s_load_dwordx2 s[28:29], s[0:1], 80")
    a("s_load_dwordx4 s[4:7], s[0:1], 0")
    a("s_load_dwordx2 s[24:25], s[0:1], 64")
    stamp(a,0)
    t0=TMP+4
    a(f"v_lshrrev_b32 v{t0}, 6, v0")
    a(f"v_and_b32 v{t0+1}, 63, v0")
    a(f"v_readfirstlane_b32 s{sWAVE}, v{t0}")
    L=t0+1
    a(f"s_mov_b32 s{sB}, s2")
    n4=XF; tid16=XF+4; z=XF+5
    a(f"v_lshlrev_b32 v{tid16}, 4, v0",f"v_lshlrev_b32 v{z}, 2, v0")
    Ls=XF+13
    a(f"v_mov_b32 v{Ls}, v{L}")
    ent=t0
    a(f"s_mul_i32 s42, s{sB}, 5120",f"s_add_u32 s42, s42, {WS_LIST}","s_add_u32 s43, s42, 4096")
    a("s_waitcnt lgkmcnt(0)")
    srd(a,sWS,28,WS_TOT)
    a(f"buffer_load_dwordx4 {vr(ent,4)}, v{tid16}, s[{sWS}:{sWS+3}], s42 offen")
    a(f"buffer_load_dword v{ent+4}, v{z}, s[{sWS}:{sWS+3}], s43 offen")
    L=Ls
    a(f"s_mul_i32 s{sSTART}, s2, 625",f"s_add_u32 s{sCOUNT}, s{sSTART}, {625+31}",f"s_add_u32 s{sSTART}, s{sSTART}, 31")
    a(f"s_lshr_b32 s{sSTART}, s{sSTART}, 5",f"s_lshr_b32 s{sCOUNT}, s{sCOUNT}, 5",f"s_sub_u32 s{sCOUNT}, s{sCOUNT}, s{sSTART}")
    e=XF+8; h=XF+9; u=XF+10; w=XF+11; x=XF+12
    a(f"v_lshrrev_b32 v{u}, 4, v{L}")
    a(f"v_and_b32 v{x}, 15, v{L}",f"v_xor_b32 v{x}, v{x}, v{u}",f"v_lshlrev_b32 v{PI[0]+1}, 4, v{x}",f"v_mov_b32 v{PI[1]+1}, v{PI[0]+1}")
    a(f"s_lshl_b32 s42, s{sWAVE}, 3")
    a(f"v_add_u32 v{x}, s42, v{u}")
    a(f"v_and_b32 v{w}, 8, v{x}",f"v_lshrrev_b32 v{w}, 1, v{w}",f"v_and_b32 v{x}, 0x13, v{x}",f"v_or_b32 v{x}, v{x}, v{w}")
    a(f"v_add_u32 v{w}, 8, v{x}")
    a(f"v_mov_b32 v{e}, 0x{NULLI:x}")
    for (reg,dstp) in ((x,PI[0]),(w,PI[1])):
        a(f"v_cmp_gt_u32 vcc, s{sCOUNT}, v{reg}")
        a(f"v_add_u32 v{reg}, s{sSTART}, v{reg}")
        a("s_nop 0")
        a(f"v_cndmask_b32 v{dstp}, v{e}, v{reg}, vcc")
    srd(a,sX,4,10000,256)
    a(f"s_mul_i32 s42, s{sWAVE}, {2*XBLK}",f"s_add_u32 m0, s42, {XO}")
    a(f"buffer_load_dwordx4 v[{PI[0]}:{PI[0]+1}], s[{sX}:{sX+3}], 0 idxen offen lds")
    a(f"s_add_u32 m0, s42, {XO+XBLK}","s_nop 0")
    a(f"buffer_load_dwordx4 v[{PI[1]}:{PI[1]+1}], s[{sX}:{sX+3}], 0 idxen offen lds")
    wv=XF+14
    a(f"s_lshl_b32 s42, s{sWAVE}, 11",f"v_lshl_add_u32 v{wv}, v{L}, 4, s42")
    for s in range(8):
        a(f"s_mov_b32 s42, {WS_W1+(8+s)*8192}")
        for c in range(2): a(f"buffer_load_dwordx4 {vr(WD+(c*8+s)*4,4)}, v{wv}, s[{sWS}:{sWS+3}], s42 offen offset:{c*1024}")
    bq=XF+15
    a(f"v_and_b32 v{bq}, 31, v{L}",f"s_lshl_b32 s42, s{sWAVE}, 8",f"v_lshl_add_u32 v{bq}, v{bq}, 2, s42",f"s_mov_b32 s42, {WS_B1}")
    a(f"buffer_load_dword v{ent+5}, v{bq}, s[{sWS}:{sWS+3}], s42 offen")
    a(f"buffer_load_dword v{ent+6}, v{bq}, s[{sWS}:{sWS+3}], s42 offen offset:128")
    a(f"s_mov_b32 s42, {WS_W1+16*8192}")
    for c in range(2): a(f"buffer_load_dwordx4 {vr(W1E+4*c,4)}, v{wv}, s[{sWS}:{sWS+3}], s42 offen offset:{c*1024}")
    for k in range(4): a(f"v_mov_b32 v{n4+k}, 0x{NULLI:x}")
    list_fill(a,tid16,n4)
    a(f"v_mov_b32 v{z+1}, 0")
    a(f"ds_write_b32 v{z}, v{z+1}")
    a(f"v_and_b32 v{e}, 31, v{L}",f"v_lshrrev_b32 v{h}, 5, v{L}")
    a(f"v_lshrrev_b32 v{u}, 2, v{e}")
    xa=[22,23]
    a(f"s_movk_i32 s42, {XBLK}")
    a(f"v_mul_u32_u24 v{w}, s42, v{u}")
    a(f"v_and_b32 v{x}, 3, v{e}")
    a(f"v_lshl_add_u32 v{w}, v{x}, 8, v{w}")
    a(f"v_xor_b32 v{x}, v{x}, v{h}")
    a(f"v_lshl_add_u32 v{w}, v{x}, 4, v{w}")
    a(f"v_add_u32 v{xa[0]}, {XO}, v{w}",f"v_xor_b32 v{xa[1]}, 32, v{xa[0]}")
    a(f"v_lshrrev_b32 v{x}, 4, v{e}",f"v_xor_b32 v{x}, v{x}, v{h}",f"v_lshlrev_b32 v{x}, 4, v{x}",f"v_lshl_add_u32 v{x}, v{e}, 5, v{x}",f"v_add_u32 v{vEA}, {ER}, v{x}")
    a(f"v_and_b32 v{x}, 3, v{u}",f"v_xor_b32 v{x}, v{x}, v{h}",f"v_lshlrev_b32 v{x}, 4, v{x}",f"v_lshl_add_u32 v{x}, v{e}, 6, v{x}",f"v_add_u32 v{vOA[0]}, {OR}, v{x}",f"v_xor_b32 v{vOA[1]}, 32, v{vOA[0]}")
    a(f"v_bfe_u32 v{x}, v{L}, 4, 1",f"v_lshlrev_b32 v{x}, 1, v{x}",f"v_bfe_u32 v{w}, v{L}, 1, 1",f"v_or_b32 v{x}, v{x}, v{w}")
    a(f"v_xor_b32 v{x}, v{x}, v{h}",f"v_lshlrev_b32 v{x}, 4, v{x}")
    a(f"v_and_b32 v{w}, 1, v{L}",f"v_lshl_add_u32 v{x}, v{w}, 3, v{x}")
    a(f"v_bfe_u32 v{w}, v{L}, 2, 2",f"v_lshl_add_u32 v{w}, v{h}, 2, v{w}",f"v_lshl_add_u32 v{x}, v{w}, 6, v{x}")
    a(f"v_add_u32 v{vOB[0]}, {OR}, v{x}",f"v_xor_b32 v{vOB[1]}, 32, v{vOB[0]}",f"v_add_u32 v{vOB[1]}, 512, v{vOB[1]}")
    a(f"s_lshl_b32 s42, s{sWAVE}, 12",f"s_add_u32 s{sPM0}, s42, {PR}")
    a(f"v_bfe_u32 v{x}, v{e}, 1, 3",f"v_xor_b32 v{x}, v{x}, v{h}",f"v_lshlrev_b32 v{x}, 4, v{x}",f"v_lshl_add_u32 v{x}, v{e}, 7, v{x}")
    a(f"v_add_u32 v{vPA[0]}, s{sPM0}, v{x}")
    for k in range(1,4): a(f"v_xor_b32 v{vPA[k]}, {32*k}, v{vPA[0]}")
    a(f"v_and_b32 v{x}, 7, v{L}",f"v_lshrrev_b32 v{w}, 4, v{L}",f"v_xor_b32 v{x}, v{x}, v{w}",f"v_lshlrev_b32 v{x}, 4, v{x}")
    a(f"s_lshl_b32 s42, s{sWAVE}, 7",f"v_add_u32 v{TMP}, s42, v{x}")
    a(f"v_lshrrev_b32 v{x}, 3, v{L}",f"v_lshlrev_b32 v{x}, 2, v{x}",f"v_add_u32 v{TMP+2}, {LS}, v{x}")
    a(f"v_lshlrev_b32 v{x}, 3, v{h}",f"v_sub_u32 v{x}, v{e}, v{x}")
    a(f"v_and_b32 v{w}, 1, v{x}",f"v_lshlrev_b32 v{w}, 4, v{w}",f"v_mov_b32 v{u}, 0x3f80",f"v_lshlrev_b32 v{w}, v{w}, v{u}")
    a(f"v_ashrrev_i32 v{x}, 1, v{x}")
    for k in range(8):
        a(f"v_cmp_eq_u32 vcc, {k if k<4 else k+4}, v{x}","s_nop 1",f"v_cndmask_b32 v{ID+k}, 0, v{w}, vcc")
    a(f"v_cmp_eq_u32 vcc, 0, v{h}","s_nop 1",f"v_cndmask_b32 v{ONE}, 0, v{u}, vcc")
    for k in range(1,4): a(f"v_mov_b32 v{ONE+k}, 0")
    srd(a,sOUT,24,2560000)
    a(f"s_add_u32 s{sP}, s28, {WS_P}",f"s_addc_u32 s{sP+1}, s29, 0",f"s_or_b32 s{sP+1}, s{sP+1}, 0x{512<<16:x}",f"s_mov_b32 s{sP+2}, 10000",f"s_mov_b32 s{sP+3}, 0x00020000")
    a(f"v_lshrrev_b32 v{u}, 4, v{L}")
    a(f"s_cmp_lg_u32 s{sWAVE}, 0","s_cbranch_scc1 K2_AUX1")
    srd(a,sAUX,6,160000,32)
    for j in range(3): a(f"s_mov_b32 s{sAM[j]}, {ER+((j+1)%3)*1024}",f"s_mov_b32 s{sAP[j]}, {ER+j*1024}")
    a(f"v_and_b32 v{x}, 1, v{L}",f"v_xor_b32 v{x}, v{x}, v{h}",f"v_lshlrev_b32 v{AX+1}, 4, v{x}")
    a(f"v_lshrrev_b32 v{x}, 1, v{L}",f"v_lshlrev_b32 v{x}, 2, v{x}",f"v_add_u32 v{TMP+1}, {LE}, v{x}",f"v_add_u32 v{TMP+3}, {LE+128}, v{x}")
    a("s_branch K2_AUX2")
    a("K2_AUX1:")
    a(f"s_add_u32 s{sAUX}, s28, {WS_ID}",f"s_addc_u32 s{sAUX+1}, s29, 0",f"s_or_b32 s{sAUX+1}, s{sAUX+1}, 0x{64<<16:x}",f"s_mov_b32 s{sAUX+2}, 32",f"s_mov_b32 s{sAUX+3}, 0x00020000")
    a(f"s_min_u32 s42, s{sWAVE}, 2","s_sub_u32 s42, s42, 1")
    a(f"s_lshl_b32 s43, s42, 10")
    for j in range(3): a(f"s_add_u32 s{sAM[j]}, s43, {OR+j*2048}",f"s_add_u32 s{sAP[j]}, s43, {OR+min(j,1)*2048}")
    a(f"v_and_b32 v{x}, 3, v{L}",f"v_xor_b32 v{x}, v{x}, v{u}",f"v_lshlrev_b32 v{AX+1}, 4, v{x}")
    a(f"s_lshl_b32 s43, s42, 6",f"s_add_u32 s43, s43, {LD}")
    a(f"v_lshrrev_b32 v{x}, 2, v{L}",f"v_lshl_add_u32 v{TMP+3}, v{x}, 2, s43",f"v_mov_b32 v{TMP+1}, v{TMP+3}")
    a("K2_AUX2:")
    cb=XF+16; cb4=XF+17
    a("s_movk_i32 s42, 2000")
    a(f"v_lshrrev_b32 v{cb}, 2, v0",f"v_lshrrev_b32 v{cb4}, 4, v0",f"v_add_u32 v{cb4}, 64, v{cb4}")
    a(f"v_lshlrev_b32 v{XF+18}, 2, v{cb}",f"v_lshlrev_b32 v{XF+19}, 2, v{cb4}")
    a(f"v_mul_u32_u24 v{cb}, s42, v{cb}",f"v_mul_u32_u24 v{cb4}, s42, v{cb4}")
    a("s_waitcnt lgkmcnt(0)","s_barrier")
    a("s_waitcnt vmcnt(22)")
    stamp(a,1)
    for (er,fa,lab) in ((ent,XF+18,"A"),(ent+4,XF+19,"B")):
        a(f"v_cmp_eq_u32 vcc, -2, v{er}")
        a("s_and_saveexec_b64 s[42:43], vcc")
        a(f"v_mov_b32 v{XF+20}, 1")
        a(f"ds_write_b32 v{fa}, v{XF+20} offset:{FLG}")
        a("s_mov_b64 exec, s[42:43]")
    tP,tA,tB,tC,tOne,tz=XF+21,XF+22,XF+23,XF+24,XF+25,XF+26
    def mg(j): a(f"v_cmp_le_i32_e64 s[{sMASK+2*j}:{sMASK+2*j+1}], 0, v{ent+j}")
    def fg(j):
        a(f"v_and_b32 v{tA}, 0x3fff, v{ent+j}",f"v_bfe_u32 v{tB}, v{ent+j}, 14, 5",f"v_lshrrev_b32 v{tC}, 19, v{ent+j}",f"v_add_u32 v{tC}, v{tC}, v{cb if j<4 else cb4}")
    compact(a,5,mg,fg,tP,tA,tB,tC,tOne,tz)
    a("s_waitcnt vmcnt(20) lgkmcnt(0)")
    a("s_barrier")
    stamp(a,2)
    def read_n_flags(flags):
        a(f"v_mov_b32 v{tz}, {CNT}",f"ds_read_b32 v{tA}, v{tz}")
        if flags:
            a(f"v_and_b32 v{tB}, 63, v0",f"v_lshlrev_b32 v{tB}, 2, v{tB}")
            a(f"ds_read_b32 v{tC}, v{tB} offset:{FLG}",f"ds_read_b32 v{tP}, v{tB} offset:{FLG+256}")
    def use_n_flags(flags):
        a(f"v_readfirstlane_b32 s{sN}, v{tA}")
        if flags:
            a(f"v_cmp_ne_u32_e64 s[{sF0}:{sF0+1}], 0, v{tC}")
            a(f"v_cmp_ne_u32_e64 s[42:43], 0, v{tP}")
            a("s_nop 0")
            a(f"s_and_b32 s{sF1}, s42, 0xffff")
            a(f"s_mov_b32 s{sHALF}, 0",f"s_mov_b32 s{sW2}, 0")
        a(f"s_add_u32 s{sNT}, s{sN}, 31",f"s_lshr_b32 s{sNT}, s{sNT}, 5")
    read_n_flags(True)
    def first_mid():
        pass
    a(f"v_mov_b32 v{vLX}, v{TMP+2}",f"v_mov_b32 v{vLA}, v{TMP+3}")
    def offs():
        for b in range(4):
            if b&1: a(f"v_xor_b32 v{PI[b]+1}, 64, v{TMP}",f"v_xor_b32 v{G1P[b]+1}, 64, v{TMP}",f"v_xor_b32 v{G2P[b]+1}, 64, v{TMP}")
            else: a(f"v_mov_b32 v{PI[b]+1}, v{TMP}",f"v_mov_b32 v{G1P[b]+1}, v{TMP}",f"v_mov_b32 v{G2P[b]+1}, v{TMP}")
        a(f"v_mov_b32 v{G1P[4]+1}, v{AX+1}",f"v_mov_b32 v{G2P[4]+1}, v{AX+1}")
    offs()
    idx_group(a,0,PI,AX); idx_group(a,1,G1P[:4],G1P[4])
    dma_group(a,0,PI,AX,wait=5)
    use_n_flags(True)
    idx_group(a,2,G2P[:4],G2P[4])
    dma_group(a,1,G1P[:4],G1P[4],wait=5)
    for s in range(8): a(f"ds_read_b128 {vr(XF+4*s,4)}, v{xa[s&1]} offset:{(s>>1)*64}")
    a("s_waitcnt lgkmcnt(0)","s_barrier")
    dma_group(a,2,G2P[:4],G2P[4],wait=None)
    a("s_waitcnt vmcnt(17)")
    for c in range(2):
        for i in range(16): a(f"v_mov_b32 v{T[c]+i}, v{ent+5+c}")
    a("s_nop 1")
    for s in range(8):
        for c in range(2): a(mfma(T[c],XF+4*s,WD+(c*8+s)*4,T[c]))
    a("s_nop 7","s_nop 3")
    for c in range(2):
        for j in range(8): a(f"v_cvt_pk_bf16_f32 v{QF+8*c+j}, v{T[c]+2*j}, v{T[c]+2*j+1}")
    for i in range(32): a(f"v_mov_b32 v{S+i}, 0")
    stamp(a,3)
    a("K2_PIPE:")
    a(f"s_cmp_eq_u32 s{sNT}, 0","s_cbranch_scc1 K2_AFTER")
    for i in range(8): a(f"v_mov_b32 v{H+i}, 0")
    for i in range(8): a(f"v_mov_b32 v{OB+i}, 0")
    a(f"s_cmp_eq_u32 s{sWAVE}, 0","s_cselect_b64 vcc, -1, 0")
    a("s_waitcnt vmcnt(10)","s_barrier")
    stamp(a,4)
    errs=0
    f=Fifo()
    pre=[rd_pa(0,0,0),rd_pa(1,0,0),rd_ef(0),rd_oa(0,0),rd_oa(1,0)]+rd_idx(3)
    mc=mchain(0,0)
    for k in range(5):
        pre.append(mc[k])
        if k<2: pre.append(rd_pa(k,1,0))
    pre=with_waits(pre,f)
    sm1=slot(2,1,f,"M1",X=True,R=False,M=True,Gp=False)
    pre=pre+["s_nop 7","s_nop 4"]
    for x_ in pre+sm1: a(x_)
    errs+=check(pre+sm1,"pre")
    a("s_waitcnt lgkmcnt(0)")
    a(f"s_mov_b32 s{sREM}, s{sNT}")
    if PRIO: a(f"s_setprio {OPT.get('prio0',3)}")
    f=Fifo();
    def iteration(f,emit):
        body=[]
        for p in range(3):
            hd=[f"s_cmp_eq_u32 s{sREM}, 1",f"s_cbranch_scc1 K2_TAIL{p}"]
            for (r,pr) in PRIO:
                hd+=[f"s_cmp_eq_u32 s{sREM}, {r}",f"s_cbranch_scc1 K2_PR{p}_{pr}",f"K2_PRB{p}_{pr}:"]
            sl=slot(p,0,f,f"L{p}")+slot(p,1,f,f"L{p}")
            body+=hd+sl+[f"s_sub_u32 s{sREM}, s{sREM}, 1"]
        return body
    iteration(f,False); q1=[set(x) for x in f.q]
    body=iteration(f,True); q2=[set(x) for x in f.q]
    assert q1==q2,(q1,q2)
    a("K2_LOOP:")
    for x_ in body: a(x_)
    a(f"v_add_u32 v{vLX}, 384, v{vLX}",f"v_add_u32 v{vLA}, 384, v{vLA}")
    a("s_branch K2_LOOP")
    errs+=check(sm1+body+body[:250],"loop")
    def w2load():
        a(f"v_and_b32 v{TMP+4}, 63, v0",f"s_lshl_b32 s42, s{sWAVE}, 14",f"v_lshl_add_u32 v{TMP+4}, v{TMP+4}, 4, s42")
        for f_ in range(16):
            if f_%4==0: a(f"s_mov_b32 s42, {WS_W2+(f_//4)*4096}")
            a(f"buffer_load_dwordx4 {vr(W2Q[f_],4)}, v{TMP+4}, s[{sWS}:{sWS+3}], s42 offen offset:{(f_%4)*1024}")
        a(f"s_mov_b32 s{sW2}, 1")
    for p in range(3):
        a(f"K2_TAIL{p}:")
        if PRIO: a("s_setprio 0")
        a("s_waitcnt lgkmcnt(0)")
        a(f"s_or_b32 s42, s{sF0}, s{sF0+1}",f"s_or_b32 s42, s42, s{sF1}","s_cmp_lg_u32 s42, 0",f"s_cbranch_scc1 K2_NOW2_{p}")
        w2load()
        a(f"K2_NOW2_{p}:")
        f=Fifo()
        ta=slot(p,0,f,"",M=False); tb=slot(p,1,f,"",X=False,M=False)
        for x_ in ta+tb: a(x_)
        a("s_nop 1"); a(G(1,1))
        errs+=check(body[-120:]+ta+tb+["s_nop 1",G(1,1)],"tail")
        if p<2: a("s_branch K2_AFTER")
    a("K2_AFTER:")
    stamp(a,5)
    a("s_waitcnt lgkmcnt(0)","s_barrier")
    a(f"s_or_b32 s42, s{sF0}, s{sF0+1}",f"s_or_b32 s42, s42, s{sF1}","s_cmp_lg_u32 s42, 0","s_cbranch_scc1 K2_SLOW")
    a(f"s_cmp_lg_u32 s{sW2}, 0","s_cbranch_scc1 K2_EPI")
    w2load()
    a("K2_EPI:")
    lane=TMP+5; Uo=U[0]; B2=T[0]
    a(f"v_and_b32 v{lane}, 63, v0")
    a(f"v_lshrrev_b32 v{TMP+6}, 5, v{lane}",f"s_lshl_b32 s42, s{sWAVE}, 7",f"v_lshl_add_u32 v{TMP+6}, v{TMP+6}, 6, s42",f"s_mov_b32 s42, {WS_B2}")
    for k in range(4): a(f"buffer_load_dwordx4 {vr(B2+4*k,4)}, v{TMP+6}, s[{sWS}:{sWS+3}], s42 offen offset:{16*k}")
    a(f"v_and_b32 v{TMP+7}, 31, v{lane}",f"v_lshlrev_b32 v{TMP+8}, 2, v{TMP+7}",f"ds_read_b32 v{TMP+9}, v{TMP+8} offset:{DEG}")
    a(f"s_mov_b32 s42, 0x{NEG_LN2:x}")
    a("s_nop 7")
    for i in range(32): a(f"v_mul_f32 v{S+i}, s42, v{S+i}")
    for j in range(16): a(f"v_cvt_pk_bf16_f32 v{Uo+j}, v{S+2*j}, v{S+2*j+1}")
    a(f"s_lshl_b32 s42, s{sWAVE}, 12",f"v_lshl_add_u32 v{TMP+8}, v{lane}, 4, s42")
    for k in range(4): a(f"ds_write_b128 v{TMP+8}, {vr(Uo+4*k,4)} offset:{EX+k*1024}")
    a("s_waitcnt lgkmcnt(0)","s_barrier")
    a(f"v_lshlrev_b32 v{TMP+8}, 4, v{lane}")
    for f_ in range(16): a(f"ds_read_b128 {vr(FRQ[f_],4)}, v{TMP+8} offset:{EX+f_*1024}")
    a(f"v_cvt_f32_u32 v{TMP+9}, v{TMP+9}")
    a("s_waitcnt vmcnt(0)")
    for i in range(16): a(f"v_mul_f32 v{Uo+i}, v{TMP+9}, v{B2+i}")
    a("s_nop 0")
    for f_ in range(16):
        a(f"s_waitcnt lgkmcnt({15-f_})")
        a(mfma(Uo,W2Q[f_],FRQ[f_],Uo))
    a(f"v_add_u32 v{TMP+8}, s{sSTART}, v{TMP+7}",f"v_lshlrev_b32 v{TMP+8}, 8, v{TMP+8}")
    a(f"v_lshrrev_b32 v{TMP+6}, 5, v{lane}",f"v_lshl_add_u32 v{TMP+8}, v{TMP+6}, 5, v{TMP+8}")
    a(f"s_lshl_b32 s42, s{sWAVE}, 6",f"v_add_u32 v{TMP+8}, s42, v{TMP+8}")
    a(f"v_cmp_gt_u32 vcc, s{sCOUNT}, v{TMP+7}",f"v_mov_b32 v{TMP+6}, 0x7f000000")
    a("s_nop 1")
    a(f"v_cndmask_b32 v{TMP+8}, v{TMP+6}, v{TMP+8}, vcc")
    a("s_nop 4")
    for j in range(8): a(f"v_cvt_pk_bf16_f32 v{H+j}, v{Uo+2*j}, v{Uo+2*j+1}")
    a(f"buffer_store_dwordx4 {vr(H,4)}, v{TMP+8}, s[{sOUT}:{sOUT+3}], 0 offen")
    a(f"buffer_store_dwordx4 {vr(H+4,4)}, v{TMP+8}, s[{sOUT}:{sOUT+3}], 0 offen offset:16")
    if PROF:
        stamp(a,6)
        PB=U[1]
        a("s_waitcnt lgkmcnt(0)")
        a(f"s_lshl_b32 s42, s{sB}, 2",f"s_add_u32 s42, s42, s{sWAVE}","s_lshl_b32 s42, s42, 6",f"s_add_u32 s42, s42, {WS_PROF}")
        for i in range(7): a(f"v_mov_b32 v{PB+i}, s{64+2*i}")
        a(f"v_mov_b32 v{PB+7}, s{sNT}")
        a(f"v_mov_b32 v{TMP}, 0")
        a("s_mov_b64 exec, 1")
        a(f"buffer_store_dwordx4 {vr(PB,4)}, v{TMP}, s[{sWS}:{sWS+3}], s42 offen")
        a(f"buffer_store_dwordx4 {vr(PB+4,4)}, v{TMP}, s[{sWS}:{sWS+3}], s42 offen offset:16")
        a("s_sub_u32 s92, s94, s92",f"v_mov_b32 v{PB+8}, s92")
        a(f"buffer_store_dword v{PB+8}, v{TMP}, s[{sWS}:{sWS+3}], s42 offen offset:32")
    a("s_waitcnt vmcnt(0)")
    a("s_endpgm")
    a("K2_SLOW:")
    a("s_waitcnt vmcnt(0)")
    cch=62
    a(f"s_ff1_i32_b64 s{cch}, s[{sF0}:{sF0+1}]",f"s_cmp_lg_u32 s{cch}, -1","s_cbranch_scc1 K2_SL1")
    a(f"s_ff1_i32_b32 s{cch}, s{sF1}",f"s_add_u32 s{cch}, s{cch}, 64")
    a("K2_SL1:")
    a(f"s_mul_i32 s63, s{cch}, 2000",f"s_mul_i32 s42, s{sHALF}, 1000","s_add_u32 s63, s63, s42")
    a(f"s_cmp_eq_u32 s{sHALF}, 0","s_cbranch_scc1 K2_SL2")
    a(f"s_cmp_ge_u32 s{cch}, 64","s_cbranch_scc1 K2_SL3")
    a(f"s_bitset0_b64 s[{sF0}:{sF0+1}], s{cch}","s_branch K2_SL2")
    a("K2_SL3:")
    a(f"s_sub_u32 s42, s{cch}, 64",f"s_bitset0_b32 s{sF1}, s42")
    a("K2_SL2:")
    a(f"s_xor_b32 s{sHALF}, s{sHALF}, 1")
    a("s_load_dwordx4 s[4:7], s[0:1], 16")
    for k in range(4): a(f"v_mov_b32 v{n4+k}, 0x{NULLI:x}")
    a(f"v_lshlrev_b32 v{tid16}, 4, v0")
    list_fill(a,tid16,n4)
    a(f"v_mov_b32 v{z}, {CNT}",f"v_mov_b32 v{z+1}, 0",f"ds_write_b32 v{z}, v{z+1}")
    a("s_waitcnt lgkmcnt(0)")
    srd(a,24,4,640000); srd(a,28,6,640000)
    a("s_lshl_b32 s42, s63, 2")
    dv=XF+8; sv=XF+12
    a(f"buffer_load_dwordx4 {vr(dv,4)}, v{tid16}, s[28:31], s42 offen")
    a(f"buffer_load_dwordx4 {vr(sv,4)}, v{tid16}, s[24:27], s42 offen")
    a("s_barrier")
    a(f"s_mov_b32 s42, {MAGIC}","s_movk_i32 s43, 625")
    a("s_waitcnt vmcnt(0)")
    bk=XF+16
    for j in range(4):
        a(f"v_mul_u32_u24 v{bk+j}, s42, v{dv+j}",f"v_lshrrev_b32 v{bk+j}, 23, v{bk+j}")
    a("v_cmp_gt_u32 vcc, 250, v0","s_nop 0","s_mov_b64 s[54:55], vcc")
    def mg2(j):
        a(f"v_cmp_eq_u32_e64 s[{sMASK+2*j}:{sMASK+2*j+1}], s{sB}, v{bk+j}")
        a("s_nop 0")
        a(f"s_and_b64 s[{sMASK+2*j}:{sMASK+2*j+1}], s[{sMASK+2*j}:{sMASK+2*j+1}], s[54:55]")
    def fg2(j):
        a(f"v_mov_b32 v{tA}, v{sv+j}",f"v_subrev_u32 v{tB}, s{sSTART}, v{dv+j}",f"v_lshlrev_b32 v{tC}, 2, v0",f"v_add_u32 v{tC}, s63, v{tC}")
        if j: a(f"v_add_u32 v{tC}, {j}, v{tC}")
    compact(a,4,mg2,fg2,tP,tA,tB,tC,tOne,tz)
    a("s_waitcnt lgkmcnt(0)","s_barrier")
    read_n_flags(False)
    a(f"v_mov_b32 v{vLX}, v{TMP+2}",f"v_mov_b32 v{vLA}, v{TMP+3}")
    offs()
    idx_group(a,0,PI,AX); idx_group(a,1,G1P[:4],G1P[4])
    dma_group(a,0,PI,AX,wait=5)
    use_n_flags(False)
    idx_group(a,2,G2P[:4],G2P[4])
    dma_group(a,1,G1P[:4],G1P[4],wait=5)
    dma_group(a,2,G2P[:4],G2P[4],wait=0)
    a("s_branch K2_PIPE")
    if PRIO:
        for p in range(3):
            for (r,pr) in PRIO:
                a(f"K2_PR{p}_{pr}:",f"s_setprio {pr}",f"s_branch K2_PRB{p}_{pr}")
    a("K2_EXIT:")
    a("s_endpgm")
    print("hazard errors:",errs,file=sys.stderr)
    return a

def kd(name,vgpr,sgpr=96):
    return f""".amdhsa_kernel {name}
  .amdhsa_next_free_vgpr {vgpr}
  .amdhsa_next_free_sgpr {sgpr}
  .amdhsa_accum_offset {(vgpr+3)//4*4}
  .amdhsa_group_segment_fixed_size 0
  .amdhsa_kernarg_size 88
  .amdhsa_user_sgpr_count 2
  .amdhsa_user_sgpr_kernarg_segment_ptr 1
  .amdhsa_system_sgpr_workgroup_id_x 1
.end_amdhsa_kernel
"""
HDR=open("standalone__edge_featured_mpnn_mpnn__graph.s.ref").read().split("; Override")[0]
def full():
    o=HDR
    o+=f"; @launch kernel=k1_bin_prep_kernel grid=({K1N},1,1) block=(512,1,1) lds={LDS1}\n"
    o+=f"; @launch kernel=k2_main_kernel grid=(512,1,1) block=(256,1,1) lds={LDS2}\n"
    o+='.amdgcn_target "amdgcn-amd-amdhsa--gfx950"\n.text\n'
    for nm,g in (("k1_bin_prep_kernel",g4k1.gen_k1(OPT.get('smod',''),OPT.get('lmod',''),OPT.get('srcmask'),PROF)),("k2_main_kernel",gen_k2())):
        o+=f".globl {nm}\n.p2align 8\n.type {nm},@function\n"+g.text()
    o+='.section .rodata,"a"\n'
    o+=".p2align 6\n"+kd("k1_bin_prep_kernel",152,40)
    o+=".p2align 6\n"+kd("k2_main_kernel",256,96)
    return o
if __name__=="__main__":
    open(sys.argv[1],"w").write(full())
    print("K1N",K1N,"LDS1",LDS1,"LDS2",LDS2)
```

```python
from gen import *
WS_P=WS_END
NG=157
K1N=NCH+NG+18
LDS1=81920
WS_TOT4=WS_P+5120000
STORE_MOD=""

def gen_k1(store_mod="", list_mod="", srcmask=None, prof=0):
    a=A()
    a("k1_bin_prep_kernel:")
    a(f"s_cmp_ge_u32 s2, {K1N}")
    a("s_cbranch_scc1 K1_EXIT")
    a("s_load_dwordx2 s[4:5], s[0:1], 80")
    if prof: a("s_memrealtime s[36:37]")
    a(f"s_cmp_ge_u32 s2, {NCH}")
    a("s_cbranch_scc1 K1_NOBIN")
    a("s_load_dwordx4 s[8:11], s[0:1], 16")
    a("v_lshlrev_b32 v1, 4, v0")
    a("v_mov_b32 v4, -1","v_mov_b32 v5, -1","v_mov_b32 v6, -1","v_mov_b32 v7, -1")
    a("v_lshlrev_b32 v2, 2, v0","v_mov_b32 v3, 0")
    for i in range(4): a(f"ds_write_b128 v1, v[4:7] offset:{i*8192}")
    a("ds_write_b32 v2, v3 offset:32768")
    a("s_mul_i32 s3, s2, 8000")
    a("s_waitcnt lgkmcnt(0)")
    a("s_add_u32 s12, s8, s3","s_addc_u32 s13, s9, 0","s_mov_b32 s14, 8000","s_mov_b32 s15, 0x00020000")
    a("s_add_u32 s16, s10, s3","s_addc_u32 s17, s11, 0","s_mov_b32 s18, 8000","s_mov_b32 s19, 0x00020000")
    a("buffer_load_dwordx4 v[8:11], v1, s[16:19], 0 offen")
    a("buffer_load_dwordx4 v[12:15], v1, s[12:15], 0 offen")
    srd(a,20,4,WS_END)
    a(f"s_mov_b32 s24, {MAGIC}","s_movk_i32 s25, 625")
    a("s_barrier")
    a("v_cmp_gt_u32 vcc, 500, v0")
    a("s_and_saveexec_b64 s[26:27], vcc")
    a("s_cbranch_execz K1_BIN_SKIP")
    a("v_mov_b32 v3, 1")
    a("s_waitcnt vmcnt(1)")
    for j in range(4): a(f"v_mul_u32_u24 v{16+j}, s24, v{8+j}")
    for j in range(4): a(f"v_lshrrev_b32 v{16+j}, 23, v{16+j}")
    for j in range(4): a(f"v_lshlrev_b32 v{20+j}, 2, v{16+j}")
    for j in range(4): a(f"ds_add_rtn_u32 v{24+j}, v{20+j}, v3 offset:32768")
    for j in range(4): a(f"v_mad_u32_u24 v{28+j}, v{16+j}, s25, 31")
    for j in range(4): a(f"v_lshrrev_b32 v{28+j}, 5, v{28+j}")
    for j in range(4): a(f"v_sub_u32 v{28+j}, v{8+j}, v{28+j}")
    a("v_lshlrev_b32 v2, 21, v0")
    a("s_waitcnt vmcnt(0)")
    if srcmask is not None:
        for j in range(4): a(f"v_and_b32 v{12+j}, {srcmask}, v{12+j}")
    for j in range(4): a(f"v_lshl_or_b32 v{28+j}, v{28+j}, 14, v{12+j}")
    for j in range(4):
        a(f"v_or_b32 v{28+j}, v{28+j}, v2")
        if j: a(f"v_add_u32 v{28+j}, {j<<19}, v{28+j}")
    for j in range(4): a(f"v_lshlrev_b32 v{16+j}, 6, v{16+j}")
    a("v_mov_b32 v3, 34816")
    a("s_waitcnt lgkmcnt(0)")
    for j in range(4):
        a(f"v_lshl_add_u32 v{16+j}, v{24+j}, 2, v{16+j}")
        a(f"v_cmp_gt_u32 vcc, {CAP}, v{24+j}")
        a("s_nop 1")
        a(f"v_cndmask_b32 v{16+j}, v3, v{16+j}, vcc")
        a(f"ds_write_b32 v{16+j}, v{28+j}")
    a("K1_BIN_SKIP:")
    a("s_mov_b64 exec, s[26:27]")
    a("s_waitcnt lgkmcnt(0)")
    a("s_barrier")
    a("v_lshrrev_b32 v2, 2, v0")
    a("v_lshlrev_b32 v3, 2, v2")
    for i in range(4):
        a(f"ds_read_b128 v[{8+4*i}:{11+4*i}], v1 offset:{i*8192}")
        a(f"ds_read_b32 v{24+i}, v3 offset:{32768+i*512}")
    a("s_movk_i32 s25, 5120")
    a("v_mul_u32_u24 v2, s25, v2")
    a("v_and_b32 v3, 3, v0")
    a("v_lshl_add_u32 v2, v3, 4, v2")
    a("s_lshl_b32 s3, s2, 6")
    a(f"s_add_u32 s3, s3, {WS_LIST}")
    a("v_mov_b32 v4, -2")
    for i in range(4):
        a(f"s_waitcnt lgkmcnt({6-2*i})")
        a(f"v_cmp_lt_u32 vcc, {CAP}, v{24+i}")
        a("s_nop 1")
        for k in range(4): a(f"v_cndmask_b32 v{8+4*i+k}, v{8+4*i+k}, v4, vcc")
        a(f"buffer_store_dwordx4 v[{8+4*i}:{11+4*i}], v2, s[20:23], s3 offen{list_mod}")
        if i<3: a(f"s_add_u32 s3, s3, {128*5120}")
    a("s_endpgm")
    a("K1_NOBIN:")
    a(f"s_cmp_ge_u32 s2, {NCH+NG}")
    a("s_cbranch_scc1 K1_PREP")
    a("s_load_dwordx2 s[8:9], s[0:1], 0")
    a("s_load_dwordx2 s[10:11], s[0:1], 32")
    a("v_and_b32 v1, 63, v0")
    a("v_lshrrev_b32 v2, 6, v0")
    a(f"s_sub_u32 s3, s2, {NCH}")
    a("v_readfirstlane_b32 s6, v2")
    a("s_lshl_b32 s3, s3, 6")
    a("v_lshrrev_b32 v3, 4, v1")
    a("s_lshl_b32 s7, s6, 3")
    a("v_add_u32 v4, s7, v3")
    a("v_add_u32 v5, 4, v4")
    a("v_and_b32 v6, 15, v1")
    for r in (4,5):
        a(f"v_and_b32 v7, 15, v{r}",f"v_xor_b32 v7, v7, v6",f"v_add_u32 v{r}, s3, v{r}",f"v_lshlrev_b32 v{r}, 8, v{r}",f"v_lshl_add_u32 v{r}, v7, 4, v{r}")
    a("v_lshrrev_b32 v6, 5, v1")
    a("v_and_b32 v7, 31, v1")
    a("v_lshlrev_b32 v8, 2, v6","v_xor_b32 v7, v7, v8","v_lshlrev_b32 v7, 4, v7")
    a("v_lshl_add_u32 v8, v6, 9, v7")
    a("v_xor_b32 v9, 128, v8")
    a("s_waitcnt lgkmcnt(0)")
    if prof: a("s_memrealtime s[28:29]")
    srd(a,12,8,2560000)
    srd(a,16,10,128*512)
    a("s_add_u32 s20, s4, %d"%WS_P,"s_addc_u32 s21, s5, 0","s_mov_b32 s22, 5120000","s_mov_b32 s23, 0x00020000")
    a("s_lshl_b32 s7, s6, 11","s_add_u32 m0, s7, 65536","s_lshl_b32 s24, s6, 13")
    a("buffer_load_dwordx4 v4, s[12:15], 0 offen lds")
    a("s_add_u32 m0, s7, 66560","s_nop 0")
    a("buffer_load_dwordx4 v5, s[12:15], 0 offen lds")
    for j in range(8):
        a(f"s_add_u32 s25, s24, {j*1024}","s_mov_b32 m0, s25","s_nop 0")
        a(f"buffer_load_dwordx4 v{8+(j&1)}, s[16:19], s25 offen lds")
    a("v_bfe_u32 v10, v1, 2, 2")
    a("v_lshl_add_u32 v11, v6, 3, v10")
    a("v_lshlrev_b32 v11, 9, v11")
    a("v_and_b32 v12, 1, v1","v_lshlrev_b32 v12, 1, v12","v_bfe_u32 v13, v1, 4, 1","v_or_b32 v12, v12, v13")
    a("s_lshl_b32 s7, s6, 2","v_or_b32 v12, s7, v12")
    a("v_lshlrev_b32 v10, 2, v10","v_xor_b32 v12, v12, v10")
    a("v_lshl_add_u32 v11, v12, 4, v11")
    a("v_bfe_u32 v13, v1, 1, 1","v_lshl_add_u32 v11, v13, 3, v11")
    a("v_and_b32 v12, 31, v1","v_and_b32 v13, 15, v1","v_xor_b32 v13, v13, v6","v_lshlrev_b32 v13, 4, v13")
    a("v_lshl_add_u32 v13, v12, 8, v13","v_add_u32 v16, 0x10000, v13")
    for s in range(1,8): a(f"v_xor_b32 v{16+s}, {s<<5}, v16")
    a("v_add_u32 v14, s3, v12","v_lshlrev_b32 v14, 9, v14","v_lshl_add_u32 v14, v6, 5, v14","s_lshl_b32 s7, s6, 6","v_add_u32 v14, s7, v14")
    a(f"s_mov_b32 s7, 0x{NEG_LOG2E:x}")
    WF=24; XFa=56; D0=120
    a("s_waitcnt vmcnt(0)","s_barrier")
    if prof: a("s_memrealtime s[30:31]")
    for s in range(8):
        for q in range(2): a(f"ds_read_b64_tr_b16 v[{WF+4*s+2*q}:{WF+4*s+2*q+1}], v11 offset:{s*8192+q*2048}")
        a(f"ds_read_b128 v[{XFa+4*s}:{XFa+4*s+3}], v{16+s}")
    for s in range(4):
        a(f"ds_read_b128 v[{XFa+32+4*s}:{XFa+32+4*s+3}], v{16+s} offset:8192")
    for s in range(8):
        n=3*(7-s)+4
        a(f"s_waitcnt lgkmcnt({min(n,15)})")
        if s==4:
            pass
        a(f"v_mfma_f32_32x32x16_bf16 v[{D0}:{D0+15}], v[{WF+4*s}:{WF+4*s+3}], v[{XFa+4*s}:{XFa+4*s+3}], "+("0" if s==0 else f"v[{D0}:{D0+15}]"))
    for s in range(4,8):
        a(f"ds_read_b128 v[{XFa+32+4*s}:{XFa+32+4*s+3}], v{16+s} offset:8192")
    for s in range(8):
        if s==0: a("s_waitcnt lgkmcnt(4)")
        if s>=4: a(f"s_waitcnt lgkmcnt({7-s})")
        a(f"v_mfma_f32_32x32x16_bf16 v[{D0+16}:{D0+31}], v[{WF+4*s}:{WF+4*s+3}], v[{XFa+32+4*s}:{XFa+32+4*s+3}], "+("0" if s==0 else f"v[{D0+16}:{D0+31}]"))
    for tt in range(2):
        if tt==1: a("s_nop 7","s_nop 3")
        for i in range(16): a(f"v_mul_f32 v{D0+16*tt+i}, s7, v{D0+16*tt+i}")
        for j in range(8): a(f"v_cvt_pk_bf16_f32 v{XFa+8*tt+j}, v{D0+16*tt+2*j}, v{D0+16*tt+2*j+1}")
        if tt==1: a("v_add_u32 v14, 0x4000, v14")
        if store_mod!="skip":
            a(f"buffer_store_dwordx4 v[{XFa+8*tt}:{XFa+8*tt+3}], v14, s[20:23], 0 offen{store_mod}")
            a(f"buffer_store_dwordx4 v[{XFa+8*tt+4}:{XFa+8*tt+7}], v14, s[20:23], 0 offen offset:16{store_mod}")
    a("s_endpgm")
    a("K1_PREP:")
    a(f"s_sub_u32 s3, s2, {NCH+NG}")
    a("s_load_dwordx4 s[8:11], s[0:1], 32")
    a("s_load_dwordx4 s[12:15], s[0:1], 48")
    a("v_and_b32 v1, 63, v0")
    a("v_lshrrev_b32 v2, 5, v1")
    a("v_and_b32 v3, 31, v0")
    a("s_waitcnt lgkmcnt(0)")
    srd(a,20,4,WS_END)
    a("s_cmp_ge_u32 s3, 9")
    a("s_cbranch_scc1 K1_PREP2")
    a("s_add_u32 s3, s3, 8")
    srd(a,16,8,272*256*2)
    a("v_lshrrev_b32 v4, 6, v0")
    a("v_lshl_add_u32 v4, v4, 5, v3")
    a("v_lshlrev_b32 v4, 1, v4")
    a("v_lshl_add_u32 v4, v2, 12, v4")
    a("s_lshl_b32 s6, s3, 13")
    for j in range(8): a(f"buffer_load_ushort v{8+j}, v4, s[16:19], s6 offen offset:{j*512}")
    a(f"s_mov_b32 s7, 0x{NEG_LOG2E:x}")
    a("v_lshlrev_b32 v5, 4, v0")
    a("s_waitcnt vmcnt(0)")
    for j in range(8): a(f"v_lshlrev_b32 v{8+j}, 16, v{8+j}")
    for j in range(8): a(f"v_mul_f32 v{8+j}, s7, v{8+j}")
    for j in range(4): a(f"v_cvt_pk_bf16_f32 v{16+j}, v{8+2*j}, v{9+2*j}")
    a(f"buffer_store_dwordx4 v[16:19], v5, s[20:23], s6 offen")
    a("s_endpgm")
    a("K1_PREP2:")
    a("s_cmp_ge_u32 s3, 17")
    a("s_cbranch_scc1 K1_PREP3")
    srd(a,16,12,256*128*2)
    a("s_sub_u32 s3, s3, 9")
    a("v_lshrrev_b32 v4, 8, v0")
    a("s_lshl_b32 s6, s3, 1")
    a("v_add_u32 v4, s6, v4")
    a("v_bfe_u32 v5, v0, 6, 2")
    a("v_bfe_u32 v6, v3, 2, 1","v_lshlrev_b32 v6, 4, v6")
    a("v_lshrrev_b32 v7, 3, v3","v_lshl_add_u32 v6, v7, 2, v6")
    a("v_and_b32 v7, 3, v3","v_add_u32 v6, v6, v7")
    a("v_lshl_add_u32 v6, v5, 5, v6")
    a("v_lshlrev_b32 v6, 1, v6")
    a("v_lshl_add_u32 v6, v4, 12, v6")
    a("v_lshl_add_u32 v6, v2, 10, v6")
    for q in range(2):
        for r in range(4): a(f"buffer_load_ushort v{8+4*q+r}, v6, s[16:19], 0 offen offset:{(8*q+r)*256}")
    a("v_lshl_add_u32 v5, v5, 4, v4","v_lshlrev_b32 v5, 10, v5","v_lshl_add_u32 v5, v1, 4, v5")
    a(f"s_mov_b32 s6, {WS_W2}")
    a("s_waitcnt vmcnt(0)")
    for j in range(4): a(f"v_lshl_or_b32 v{16+j}, v{9+2*j}, 16, v{8+2*j}")
    a(f"buffer_store_dwordx4 v[16:19], v5, s[20:23], s6 offen")
    a("s_endpgm")
    a("K1_PREP3:")
    srd(a,16,10,512)
    srd(a,24,14,256)
    a("v_lshlrev_b32 v4, 1, v0","v_lshlrev_b32 v5, 2, v0")
    a("buffer_load_ushort v8, v4, s[16:19], 0 offen")
    a("buffer_load_ushort v9, v4, s[24:27], 0 offen")
    a("v_lshrrev_b32 v6, 4, v0","v_and_b32 v7, 15, v0","v_lshlrev_b32 v7, 1, v7")
    a("v_mov_b32 v10, 0","v_mov_b32 v11, 0x3f80","v_mov_b32 v12, 0x3f800000")
    a("v_cmp_eq_u32 vcc, v6, v7","s_nop 1","v_cndmask_b32 v10, v10, v11, vcc")
    a("v_add_u32 v7, 1, v7")
    a("v_cmp_eq_u32 vcc, v6, v7","s_nop 1","v_cndmask_b32 v10, v10, v12, vcc")
    a(f"s_mov_b32 s6, {WS_ID}")
    a("buffer_store_dword v10, v5, s[20:23], s6 offen")
    a(f"s_mov_b32 s7, 0x{NEG_LOG2E:x}")
    a("s_waitcnt vmcnt(1)")
    a("v_lshlrev_b32 v8, 16, v8","v_lshlrev_b32 v9, 16, v9","v_mul_f32 v8, s7, v8")
    a("v_cmp_gt_u32 vcc, 256, v0","s_and_saveexec_b64 s[28:29], vcc","s_cbranch_execz K1_EXIT")
    a(f"s_mov_b32 s6, {WS_B1}")
    a("buffer_store_dword v8, v5, s[20:23], s6 offen")
    a("v_cmp_gt_u32 vcc, 128, v0","s_and_saveexec_b64 s[28:29], vcc","s_cbranch_execz K1_EXIT")
    a(f"s_mov_b32 s6, {WS_B2}")
    a("buffer_store_dword v9, v5, s[20:23], s6 offen")
    a("K1_EXIT:")
    a("s_endpgm")
    if prof:
        n=len(a.l)
        for i in range(n-1):
            if a.l[i]=="s_endpgm": a.l[i]="s_branch K1_PEND"
        a("K1_PEND:")
        a("s_waitcnt vmcnt(0)")
        a("s_memrealtime s[38:39]")
        a("s_mov_b64 exec, 1")
        a(f"s_add_u32 s32, s4, {WS_TOT4+512*4*64}","s_addc_u32 s33, s5, 0","s_mov_b32 s34, 65536","s_mov_b32 s35, 0x00020000")
        a("v_lshrrev_b32 v1, 6, v0","s_lshl_b32 s3, s2, 3","v_add_u32 v1, s3, v1","v_lshlrev_b32 v1, 4, v1")
        a("s_waitcnt lgkmcnt(0)")
        a("v_mov_b32 v2, s36","v_mov_b32 v3, s38","v_mov_b32 v4, s28","v_mov_b32 v5, s30")
        a("buffer_store_dwordx4 v[2:5], v1, s[32:35], 0 offen")
        a("s_endpgm")
    return a
```

```python
import sys
from gen import *
from gen2 import mfma, Fifo, regs_of, check, with_waits
from g4k1 import WS_P, WS_TOT4

DEG=0; CNT=128; FLG=256
LS=1024; LE=6656; LD=12288
TBL=17920; PR=19712; PSLOT=16384
TRS=80; ZROW=TBL+20*TRS; LDS2=PR+3*PSLOT
XO=PR+2*PSLOT; XBLK=1088
EX=1024
PI=[2,4,6,8]; AX=10
vLA=1; vPA=[12,13,14,15]; vH16=16; vOAa=17; vOBa=[18,19,22,23]; vOBo=20; vLX=21; vLB=255
W1E=24; QF=32; ID=48; ONE=56; S=60; U=[92,108]; H=124; EFR=[132,240,236]; OA=136; OB=144; PA=152; T=[160,176,192]
XF=208; WD=60; TMP=244
sX=8; sAUX=12; sWS=16; sOUT=20
sWAVE=32; sB=33; sSTART=34; sCOUNT=35; sN=36; sNT=37; sREM=38; sPM0=39
sMASK=44
sF0=56; sF1=58; sHALF=59; sW2=60; sT=61
sP=84

CFG=dict(GB=2,M=[7,12,23,29,36],O=18,G0=50,D=[14,20,26,33,41],IDX=40,OBL=9,OBA=52,OAA=4)

def G(c,s2): return mfma(S+16*c,H+4*s2,OB+4*s2,S+16*c)
def Rstream(tr,ur):
    u=U[ur]; t=T[tr]
    rc=lambda k:[f"v_rcp_f32 v{u+i}, v{u+i}" for i in range(4*k,4*k+4)]
    mu=lambda k:[f"v_mul_f32 v{u+i}, v{t+i}, v{u+i}" for i in range(4*k,4*k+4)]
    if CFG.get('pk'): mu=lambda k:[f"v_pk_mul_f32 v[{u+i}:{u+i+1}], v[{t+i}:{t+i+1}], v[{u+i}:{u+i+1}]" for i in range(4*k,4*k+4,2)]
    cv=lambda j:f"v_cvt_pk_bf16_f32 v{H+j}, v{u+2*j}, v{u+2*j+1}"
    return rc(0)+rc(1)+mu(0)+rc(2)+mu(1)+[cv(0),cv(1)]+rc(3)+mu(2)+[cv(2),cv(3)]+mu(3)+[cv(4),cv(5),cv(6),cv(7)]
def Xstream(tx,ux): return [f"v_exp_f32 v{U[ux]+i}, v{T[tx]+i}" for i in range(16)]
def mchain(c,td,ring):
    t=T[td]
    return [mfma(t,PA,ID,None), mfma(t,PA+4,ID+4,t), mfma(t,EFR[ring],W1E+4*c,t), mfma(t,OA,QF+(c*2)*4,t), mfma(t,OA+4,QF+(c*2+1)*4,t)]
def rd_pa(a_,c,ring): return ("ds",f"ds_read_b128 {vr(PA+4*a_,4)}, v{vPA[c*2+a_]} offset:{ring*PSLOT}",[PA+4*a_+k for k in range(4)])
def rd_oa(u): return ("ds",f"ds_read_b128 {vr(OA+4*u,4)}, v{vOAa} offset:{u*32}",[OA+4*u+k for k in range(4)])
def rd_ob(s2,q): return ("ds",f"ds_read_b64_tr_b16 {vr(OB+4*s2+2*q,2)}, v{vOBa[2*s2+q]}",[OB+4*s2+2*q,OB+4*s2+2*q+1])
def rd_idx(tile):
    l=[("ds",f"ds_read_b32 v{AX}, v{vLA} offset:{tile*128}",[AX])]
    for b in range(4): l.append(("ds",f"ds_read_b32 v{PI[b]}, v{vLX} offset:{tile*128+b*32}",[PI[b]]))
    return l
def rd_oal(tile): return ("ds",f"ds_read_b32 v{vOAa}, v{vLA} offset:{LD-LE+tile*128}",[vOAa])
def add_oa(): return f"v_add_u32 v{vOAa}, v{vH16}, v{vOAa}"
def rd_obl(tile): return [("ds",f"ds_read2_b32 v[{vOBa[2*s2]}:{vOBa[2*s2]+1}], v{vLB} offset0:{tile*32+16*s2} offset1:{tile*32+16*s2+8}",[vOBa[2*s2],vOBa[2*s2]+1]) for s2 in range(2)]
def add_ob(): return [f"v_add_u32 v{r}, v{vOBo}, v{r}" for r in vOBa]
def waits(seq,fifo):
    out=[]
    for it in seq:
        if isinstance(it,tuple):
            if it[1].startswith("ds_read_b128") or it[1].startswith("ds_read_b64"):
                ar=regs_of(it[1].split(",")[1].split()[0])
                w=fifo.need(ar)
                if w: out.append(w)
            out.append(it[1]); fifo.push(it[2]); continue
        if it.startswith("v_mfma") or it.startswith("buffer_load") or it.startswith("v_add_u32"):
            toks=[t.strip() for t in it.split(None,1)[1].split(",")]
            rs=[]
            for t in toks: rs+=regs_of(t.split()[0])
            w=fifo.need(rs)
            if w: out.append(w)
        out.append(it)
    return out
def merge(valu,events):
    out=[]; n=len(valu)
    ev=sorted([(min(p,n),i,l) for i,(p,l) in enumerate(events)],key=lambda e:(e[0],e[1])); k=0
    for i in range(n+1):
        while k<len(ev) and ev[k][0]<=i:
            out+=ev[k][2]; k+=1
        if i<n: out.append(valu[i])
    return out

def slot(p,c,fifo,tag,X=True,R=True,M=True,Gp=True,rel=None):
    C=CFG
    if rel is None: rel=p
    tx=(2*p+1+c)%3; ux=1-c; tr=(2*p+c)%3; ur=c; td=(2*p+2+c)%3
    valu=(Xstream(tx,ux) if X else [])+(Rstream(tr,ur) if R else [])
    sh=(lambda pos: pos) if X else (lambda pos: pos if pos<16 else pos-16)
    short=not R
    ev=[]
    if Gp:
        l=[G(1-c,1)]
        if c==0: l+=[rd_ob(s2,q) for s2 in range(2) for q in range(2)]
        ev.append((sh(C['GB']),l))
    if M:
        r1=(p+1)%3; r2=(p+2)%3
        mc=mchain(c,td,r1)
        if c==1: ev.append((C['OAA'],[add_oa()]))
        for k in range(5):
            l=[]
            if c==1 and k==0: l+=["s_waitcnt vmcnt(5)"]
            l.append(mc[k])
            if c==0:
                if k<2: l.append(rd_pa(k,1,r1))
            else:
                if k<2: l.append(rd_pa(k,0,r2))
                if k>=3: l.append(rd_oa(k-3))
            ev.append((C['M'][k],l))
        if c==0:
            ev.append((C['IDX'],rd_idx(rel+4)+[rd_oal(rel+2)]))
        else:
            ev.append((C['OBL'],rd_obl(rel+1)))
            ev.append((C['OBA'],(["s_nop 0"] if short else [])+add_ob()))
            dm=[]
            for b in range(4):
                dm.append((f"s_add_u32 m0, s{sPM0}, {r1*PSLOT+b*1024}",f"buffer_load_dwordx4 v[{PI[b]}:{PI[b]+1}], s[{sP}:{sP+3}], 0 idxen offen lds"))
            for k,(m,d) in enumerate(dm):
                if short: ev.append((C['D'][k]+100,[m,"s_nop 0",d]))
                else:
                    ev.append((C['D'][k],[m])); ev.append((C['D'][k]+1,[d]))
            ed=f"buffer_load_dwordx4 {vr(EFR[r1],4)}, v[{AX}:{AX+1}], s[{sAUX}:{sAUX+3}], 0 idxen offen"
            ev.append((C['D'][4]+(100 if short else 0),[ed]))
    if X:
        o=mfma(U[ux],ONE,ONE,U[ux])
        ev.append((C['O'],(["s_nop 1"] if short else [])+[o]))
    if R: ev.append((sh(C['G0']),[G(c,0)]))
    seq=waits(merge(valu,ev),fifo)
    if C.get('nodma'): seq=[x for x in seq if not x.startswith("buffer_load")]
    if C.get('nods'): seq=[x for x in seq if not x.startswith("ds_read") and not x.startswith("s_waitcnt lgkm")]
    if C.get('nomfma'): seq=[x for x in seq if not x.startswith("v_mfma")]
    return seq
```

```python
import sys
from gen import *
from g4k1 import *
from g5k2 import *
import g5k2, g4k1

PROF=int(sys.argv[2]) if len(sys.argv)>2 else 0
OPT=eval(sys.argv[3]) if len(sys.argv)>3 else {}
CFG.update(OPT.get('cfg',{}))
PRIO=OPT.get('prio',[])
WS_PROF=WS_TOT4
WS_TOT=WS_TOT4+512*4*64

def stamp(a,i):
    if not PROF: return
    if PROF==1: a(f"s_memtime s[{64+2*i}:{65+2*i}]")
    else: a(f"s_memrealtime s[{64+2*i}:{65+2*i}]")
    if PROF==2 and i==4: a("s_memtime s[92:93]")
    if PROF==2 and i==5: a("s_memtime s[94:95]")

G1P=[T[2]+2*k for k in range(5)]
G2P=[XF+2*k for k in range(5)]
PFK=OPT.get('pfk',0); PFS=OPT.get('pfs',128)
def dma_group(a,g,prs,ax,wait=True):
    for b in range(4):
        a(f"s_add_u32 m0, s{sPM0}, {g*PSLOT+b*1024}")
        if b==0 and wait is not None: a(f"s_waitcnt lgkmcnt({wait})")
        else: a("s_nop 0")
        a(f"buffer_load_dwordx4 v[{prs[b]}:{prs[b]+1}], s[{sP}:{sP+3}], 0 idxen offen lds")
    a(f"buffer_load_dwordx4 {vr(EFR[g],4)}, v[{ax}:{ax+1}], s[{sAUX}:{sAUX+3}], 0 idxen offen")
def idx_group(a,g,prs,ax):
    a(f"ds_read_b32 v{ax}, v{TMP+3} offset:{g*128}")
    for b in range(4): a(f"ds_read_b32 v{prs[b]}, v{TMP+2} offset:{g*128+b*32}")
def list_fill(a,tid16,vnull4,vz4):
    for k in range(4): a(f"v_mov_b32 v{vz4+k}, {ZROW}")
    for i in range(2): a(f"ds_write_b128 v{tid16}, {vr(vnull4,4)} offset:{LS+i*4096}")
    a(f"ds_write_b128 v{tid16}, {vr(vz4,4)} offset:{LD}")
    a(f"v_cmp_gt_u32 vcc, {192*16}, v{tid16}")
    a("s_and_saveexec_b64 s[42:43], vcc")
    a(f"ds_write_b128 v{tid16}, {vr(vnull4,4)} offset:{LS+8192}")
    a("s_mov_b64 exec, s[42:43]")
    a(f"v_cmp_gt_u32 vcc, {96*16}, v{tid16}")
    a("s_and_saveexec_b64 s[42:43], vcc")
    a(f"ds_write_b128 v{tid16}, {vr(vz4,4)} offset:{LD+4096}")
    a("s_mov_b64 exec, s[42:43]")

def compact(a,nc,maskgen,fieldgen,tP,tA,tB,tC,tOne,tz):
    for j in range(nc): maskgen(j)
    a("s_nop 0")
    a(f"s_bcnt1_i32_b64 s{sT}, s[{sMASK}:{sMASK+1}]")
    for j in range(1,nc):
        a(f"s_bcnt1_i32_b64 s{sT+1}, s[{sMASK+2*j}:{sMASK+2*j+1}]",f"s_add_u32 s{sT}, s{sT}, s{sT+1}")
    a(f"v_mov_b32 v{tA}, s{sT}",f"v_mov_b32 v{tz}, {CNT}",f"v_mov_b32 v{tOne}, 1")
    a("s_mov_b64 exec, 1")
    a(f"ds_add_rtn_u32 v{tB}, v{tz}, v{tA}")
    a("s_waitcnt lgkmcnt(0)")
    a("s_mov_b64 exec, -1")
    a(f"v_readfirstlane_b32 s{sT}, v{tB}")
    for j in range(nc):
        a(f"v_mbcnt_lo_u32_b32 v{tP}, s{sMASK+2*j}, 0")
        a(f"v_mbcnt_hi_u32_b32 v{tP}, s{sMASK+2*j+1}, v{tP}")
        fieldgen(j)
        a(f"v_add_u32 v{tP}, s{sT}, v{tP}")
        a(f"v_lshlrev_b32 v{tP}, 2, v{tP}")
        a(f"v_lshlrev_b32 v{tz}, 2, v{tB}")
        a(f"v_mul_u32_u24 v{tB}, {TRS}, v{tB}",f"v_add_u32 v{tB}, {TBL}, v{tB}")
        a(f"s_mov_b64 exec, s[{sMASK+2*j}:{sMASK+2*j+1}]")
        a(f"ds_write_b32 v{tP}, v{tA} offset:{LS}")
        a(f"ds_write_b32 v{tP}, v{tC} offset:{LE}")
        a(f"ds_write_b32 v{tP}, v{tB} offset:{LD}")
        a(f"ds_add_u32 v{tz}, v{tOne} offset:{DEG}")
        a("s_mov_b64 exec, -1")
        if j<nc-1:
            a(f"s_bcnt1_i32_b64 s{sT+1}, s[{sMASK+2*j}:{sMASK+2*j+1}]",f"s_add_u32 s{sT}, s{sT}, s{sT+1}")

W2Q=[XF+4*k for k in range(9)]+[PA,PA+4,EFR[0],OA,OA+4,W1E,W1E+4]
FRQ=[S+4*k for k in range(8)]+[T[1]+4*k for k in range(4)]+[T[2]+4*k for k in range(4)]

def gen_k2():
    a=A()
    a("k2_main_kernel:")
    a("s_cmp_ge_u32 s2, 512","s_cbranch_scc1 K2_EXIT")
    a("s_load_dwordx2 s[28:29], s[0:1], 80")
    a("s_load_dwordx4 s[4:7], s[0:1], 0")
    a("s_load_dwordx2 s[24:25], s[0:1], 64")
    stamp(a,0)
    t0=TMP+4
    a(f"v_lshrrev_b32 v{t0}, 6, v0")
    a(f"v_and_b32 v{t0+1}, 63, v0")
    a(f"v_readfirstlane_b32 s{sWAVE}, v{t0}")
    L=t0+1
    a(f"s_mov_b32 s{sB}, s2")
    n4=XF; tid16=XF+4; z=XF+5
    a(f"v_lshlrev_b32 v{tid16}, 4, v0",f"v_lshlrev_b32 v{z}, 2, v0")
    Ls=XF+13
    a(f"v_mov_b32 v{Ls}, v{L}")
    ent=t0
    a(f"s_mul_i32 s42, s{sB}, 5120",f"s_add_u32 s42, s42, {WS_LIST}","s_add_u32 s43, s42, 4096")
    a("s_waitcnt lgkmcnt(0)")
    srd(a,sWS,28,WS_TOT)
    a(f"buffer_load_dwordx4 {vr(ent,4)}, v{tid16}, s[{sWS}:{sWS+3}], s42 offen")
    a(f"buffer_load_dword v{ent+4}, v{z}, s[{sWS}:{sWS+3}], s43 offen")
    L=Ls
    a(f"s_mul_i32 s{sSTART}, s2, 625",f"s_add_u32 s{sCOUNT}, s{sSTART}, {625+31}",f"s_add_u32 s{sSTART}, s{sSTART}, 31")
    a(f"s_lshr_b32 s{sSTART}, s{sSTART}, 5",f"s_lshr_b32 s{sCOUNT}, s{sCOUNT}, 5",f"s_sub_u32 s{sCOUNT}, s{sCOUNT}, s{sSTART}")
    e=XF+8; h=XF+9; u=XF+10; w=XF+11; x=XF+12
    a(f"v_lshrrev_b32 v{u}, 4, v{L}")
    a(f"v_and_b32 v{x}, 15, v{L}",f"v_xor_b32 v{x}, v{x}, v{u}",f"v_lshlrev_b32 v{PI[0]+1}, 4, v{x}",f"v_mov_b32 v{PI[1]+1}, v{PI[0]+1}")
    a(f"s_lshl_b32 s42, s{sWAVE}, 3")
    a(f"v_add_u32 v{x}, s42, v{u}")
    a(f"v_and_b32 v{w}, 8, v{x}",f"v_lshrrev_b32 v{w}, 1, v{w}",f"v_and_b32 v{x}, 0x13, v{x}",f"v_or_b32 v{x}, v{x}, v{w}")
    a(f"v_add_u32 v{w}, 8, v{x}")
    a(f"v_mov_b32 v{e}, 0x{NULLI:x}")
    for (reg,dstp) in ((x,PI[0]),(w,PI[1])):
        a(f"v_cmp_gt_u32 vcc, s{sCOUNT}, v{reg}")
        a(f"v_add_u32 v{reg}, s{sSTART}, v{reg}")
        a("s_nop 0")
        a(f"v_cndmask_b32 v{dstp}, v{e}, v{reg}, vcc")
    srd(a,sX,4,10000,256)
    a(f"s_mul_i32 s42, s{sWAVE}, {2*XBLK}",f"s_add_u32 m0, s42, {XO}")
    a(f"buffer_load_dwordx4 v[{PI[0]}:{PI[0]+1}], s[{sX}:{sX+3}], 0 idxen offen lds")
    a(f"s_add_u32 m0, s42, {XO+XBLK}","s_nop 0")
    a(f"buffer_load_dwordx4 v[{PI[1]}:{PI[1]+1}], s[{sX}:{sX+3}], 0 idxen offen lds")
    wv=XF+14
    a(f"s_lshl_b32 s42, s{sWAVE}, 11",f"v_lshl_add_u32 v{wv}, v{L}, 4, s42")
    for s in range(8):
        a(f"s_mov_b32 s42, {WS_W1+(8+s)*8192}")
        for c in range(2): a(f"buffer_load_dwordx4 {vr(WD+(c*8+s)*4,4)}, v{wv}, s[{sWS}:{sWS+3}], s42 offen offset:{c*1024}")
    bq=XF+15
    a(f"v_and_b32 v{bq}, 31, v{L}",f"s_lshl_b32 s42, s{sWAVE}, 8",f"v_lshl_add_u32 v{bq}, v{bq}, 2, s42",f"s_mov_b32 s42, {WS_B1}")
    a(f"buffer_load_dword v{ent+5}, v{bq}, s[{sWS}:{sWS+3}], s42 offen")
    a(f"buffer_load_dword v{ent+6}, v{bq}, s[{sWS}:{sWS+3}], s42 offen offset:128")
    a(f"s_mov_b32 s42, {WS_W1+16*8192}")
    for c in range(2): a(f"buffer_load_dwordx4 {vr(W1E+4*c,4)}, v{wv}, s[{sWS}:{sWS+3}], s42 offen offset:{c*1024}")
    if PFK:
        pf=XF+6+1
        pf=XF+27
        a(f"s_lshr_b32 s42, s{sB}, 3",f"s_lshl_b32 s43, s42, 2",f"s_add_u32 s42, s43, s{sWAVE}")
        a(f"s_mul_i32 s42, s42, {PFK*64*PFS}",f"s_add_u32 s42, s42, {WS_P}")
        a(f"v_mul_u32_u24 v{pf}, {PFS}, v{L}") if PFS<=64 else a(f"v_lshlrev_b32 v{pf}, 7, v{L}")
        for k in range(PFK):
            a(f"buffer_load_dword v{240+(k&3)}, v{pf}, s[{sWS}:{sWS+3}], s42 offen")
            if k<PFK-1: a(f"s_add_u32 s42, s42, {64*PFS}")
    for k in range(4): a(f"v_mov_b32 v{n4+k}, 0x{NULLI:x}")
    list_fill(a,tid16,n4,XF+28)
    a(f"v_mov_b32 v{z+1}, 0")
    a(f"ds_write_b32 v{z}, v{z+1}")
    a(f"s_cmp_lg_u32 s{sWAVE}, 0","s_cbranch_scc1 K2_NOTBL")
    for k in range(4): a(f"v_mov_b32 v{XF+28+k}, 0")
    a(f"ds_write_b128 v{tid16}, {vr(XF+28,4)} offset:{TBL}")
    a(f"v_cmp_gt_u32 vcc, {48*16}, v{tid16}","s_and_saveexec_b64 s[42:43], vcc")
    a(f"ds_write_b128 v{tid16}, {vr(XF+28,4)} offset:{TBL+1024}")
    a("s_mov_b64 exec, s[42:43]")
    a(f"v_cmp_gt_u32 vcc, 20, v{L}","s_and_saveexec_b64 s[42:43], vcc")
    a(f"v_mul_u32_u24 v{XF+28}, {TRS+2}, v{L}",f"v_mov_b32 v{XF+29}, 0x3f80")
    a(f"ds_write_b16 v{XF+28}, v{XF+29} offset:{TBL}")
    a("s_mov_b64 exec, s[42:43]")
    a("K2_NOTBL:")
    a(f"v_and_b32 v{e}, 31, v{L}",f"v_lshrrev_b32 v{h}, 5, v{L}")
    a(f"v_lshrrev_b32 v{u}, 2, v{e}")
    xa=[22,23]
    a(f"s_movk_i32 s42, {XBLK}")
    a(f"v_mul_u32_u24 v{w}, s42, v{u}")
    a(f"v_and_b32 v{x}, 3, v{e}")
    a(f"v_lshl_add_u32 v{w}, v{x}, 8, v{w}")
    a(f"v_xor_b32 v{x}, v{x}, v{h}")
    a(f"v_lshl_add_u32 v{w}, v{x}, 4, v{w}")
    a(f"v_add_u32 v{xa[0]}, {XO}, v{w}",f"v_xor_b32 v{xa[1]}, 32, v{xa[0]}")
    a(f"v_lshlrev_b32 v{vH16}, 4, v{h}")
    a(f"v_bfe_u32 v{x}, v{L}, 4, 1",f"v_lshlrev_b32 v{x}, 5, v{x}",f"v_and_b32 v{w}, 3, v{L}",f"v_lshl_add_u32 v{vOBo}, v{w}, 3, v{x}")
    a(f"v_bfe_u32 v{w}, v{L}, 2, 2",f"v_lshl_add_u32 v{w}, v{h}, 2, v{w}",f"v_lshlrev_b32 v{w}, 2, v{w}",f"v_add_u32 v{TMP+1}, {LD}, v{w}")
    a(f"s_lshl_b32 s42, s{sWAVE}, 12",f"s_add_u32 s{sPM0}, s42, {PR}")
    a(f"v_bfe_u32 v{x}, v{e}, 1, 3",f"v_xor_b32 v{x}, v{x}, v{h}",f"v_lshlrev_b32 v{x}, 4, v{x}",f"v_lshl_add_u32 v{x}, v{e}, 7, v{x}")
    a(f"v_add_u32 v{vPA[0]}, s{sPM0}, v{x}")
    for k in range(1,4): a(f"v_xor_b32 v{vPA[k]}, {32*k}, v{vPA[0]}")
    a(f"v_and_b32 v{x}, 7, v{L}",f"v_lshrrev_b32 v{w}, 4, v{L}",f"v_xor_b32 v{x}, v{x}, v{w}",f"v_lshlrev_b32 v{x}, 4, v{x}")
    a(f"s_lshl_b32 s42, s{sWAVE}, 7",f"v_add_u32 v{TMP}, s42, v{x}")
    a(f"v_lshrrev_b32 v{x}, 3, v{L}",f"v_lshlrev_b32 v{x}, 2, v{x}",f"v_add_u32 v{TMP+2}, {LS}, v{x}")
    a(f"v_lshlrev_b32 v{x}, 3, v{h}",f"v_sub_u32 v{x}, v{e}, v{x}")
    a(f"v_and_b32 v{w}, 1, v{x}",f"v_lshlrev_b32 v{w}, 4, v{w}",f"v_mov_b32 v{u}, 0x3f80",f"v_lshlrev_b32 v{w}, v{w}, v{u}")
    a(f"v_ashrrev_i32 v{x}, 1, v{x}")
    for k in range(8):
        a(f"v_cmp_eq_u32 vcc, {k if k<4 else k+4}, v{x}","s_nop 1",f"v_cndmask_b32 v{ID+k}, 0, v{w}, vcc")
    a(f"v_cmp_eq_u32 vcc, 0, v{h}","s_nop 1",f"v_cndmask_b32 v{ONE}, 0, v{u}, vcc")
    for k in range(1,4): a(f"v_mov_b32 v{ONE+k}, 0")
    srd(a,sOUT,24,2560000)
    a(f"s_add_u32 s{sP}, s28, {WS_P}",f"s_addc_u32 s{sP+1}, s29, 0",f"s_or_b32 s{sP+1}, s{sP+1}, 0x{512<<16:x}",f"s_mov_b32 s{sP+2}, 10000",f"s_mov_b32 s{sP+3}, 0x00020000")
    srd(a,sAUX,6,160000,32)
    a(f"v_lshlrev_b32 v{AX+1}, 4, v{h}")
    a(f"v_lshlrev_b32 v{x}, 2, v{e}",f"v_add_u32 v{TMP+3}, {LE}, v{x}")
    cb=XF+16; cb4=XF+17
    a("s_movk_i32 s42, 2000")
    a(f"v_lshrrev_b32 v{cb}, 2, v0",f"v_lshrrev_b32 v{cb4}, 4, v0",f"v_add_u32 v{cb4}, 64, v{cb4}")
    a(f"v_lshlrev_b32 v{XF+18}, 2, v{cb}",f"v_lshlrev_b32 v{XF+19}, 2, v{cb4}")
    a(f"v_mul_u32_u24 v{cb}, s42, v{cb}",f"v_mul_u32_u24 v{cb4}, s42, v{cb4}")
    a("s_waitcnt lgkmcnt(0)","s_barrier")
    a(f"s_waitcnt vmcnt({22+PFK})")
    stamp(a,1)
    for (er,fa,lab) in ((ent,XF+18,"A"),(ent+4,XF+19,"B")):
        a(f"v_cmp_eq_u32 vcc, -2, v{er}")
        a("s_and_saveexec_b64 s[42:43], vcc")
        a(f"v_mov_b32 v{XF+20}, 1")
        a(f"ds_write_b32 v{fa}, v{XF+20} offset:{FLG}")
        a("s_mov_b64 exec, s[42:43]")
    tP,tA,tB,tC,tOne,tz=XF+21,XF+22,XF+23,XF+24,XF+25,XF+26
    def mg(j): a(f"v_cmp_le_i32_e64 s[{sMASK+2*j}:{sMASK+2*j+1}], 0, v{ent+j}")
    def fg(j):
        a(f"v_and_b32 v{tA}, 0x3fff, v{ent+j}",f"v_bfe_u32 v{tB}, v{ent+j}, 14, 5",f"v_lshrrev_b32 v{tC}, 19, v{ent+j}",f"v_add_u32 v{tC}, v{tC}, v{cb if j<4 else cb4}")
    compact(a,5,mg,fg,tP,tA,tB,tC,tOne,tz)
    a(f"s_waitcnt vmcnt({20+PFK}) lgkmcnt(0)")
    a("s_barrier")
    stamp(a,2)
    def read_n_flags(flags):
        a(f"v_mov_b32 v{tz}, {CNT}",f"ds_read_b32 v{tA}, v{tz}")
        if flags:
            a(f"v_and_b32 v{tB}, 63, v0",f"v_lshlrev_b32 v{tB}, 2, v{tB}")
            a(f"ds_read_b32 v{tC}, v{tB} offset:{FLG}",f"ds_read_b32 v{tP}, v{tB} offset:{FLG+256}")
    def use_n_flags(flags):
        a(f"v_readfirstlane_b32 s{sN}, v{tA}")
        if flags:
            a(f"v_cmp_ne_u32_e64 s[{sF0}:{sF0+1}], 0, v{tC}")
            a(f"v_cmp_ne_u32_e64 s[42:43], 0, v{tP}")
            a("s_nop 0")
            a(f"s_and_b32 s{sF1}, s42, 0xffff")
            a(f"s_mov_b32 s{sHALF}, 0",f"s_mov_b32 s{sW2}, 0")
        a(f"s_add_u32 s{sNT}, s{sN}, 31",f"s_lshr_b32 s{sNT}, s{sNT}, 5")
    read_n_flags(True)
    def first_mid():
        pass
    a(f"v_mov_b32 v{vLX}, v{TMP+2}",f"v_mov_b32 v{vLA}, v{TMP+3}",f"v_mov_b32 v{vLB}, v{TMP+1}")
    def offs():
        for b in range(4):
            if b&1: a(f"v_xor_b32 v{PI[b]+1}, 64, v{TMP}",f"v_xor_b32 v{G1P[b]+1}, 64, v{TMP}")
            else: a(f"v_mov_b32 v{PI[b]+1}, v{TMP}",f"v_mov_b32 v{G1P[b]+1}, v{TMP}")
        a(f"v_mov_b32 v{G1P[4]+1}, v{AX+1}")
    offs()
    idx_group(a,0,PI,AX); idx_group(a,1,G1P[:4],G1P[4])
    dma_group(a,0,PI,AX,wait=5)
    use_n_flags(True)
    for s in range(8): a(f"ds_read_b128 {vr(XF+4*s,4)}, v{xa[s&1]} offset:{(s>>1)*64}")
    a(f"s_waitcnt vmcnt({7+PFK})")
    for c in range(2):
        for i in range(16): a(f"v_mov_b32 v{T[c]+i}, v{ent+5+c}")
    a("s_waitcnt lgkmcnt(0)","s_barrier")
    for s in range(8):
        for c in range(2): a(mfma(T[c],XF+4*s,WD+(c*8+s)*4,T[c]))
        if s==OPT.get('g1s',3): dma_group(a,1,G1P[:4],G1P[4],wait=None)
    a("s_nop 7","s_nop 3")
    for c in range(2):
        for j in range(8): a(f"v_cvt_pk_bf16_f32 v{QF+8*c+j}, v{T[c]+2*j}, v{T[c]+2*j+1}")
    for i in range(32): a(f"v_mov_b32 v{S+i}, 0")
    stamp(a,3)
    a("K2_PIPE:")
    a(f"s_cmp_eq_u32 s{sNT}, 0","s_cbranch_scc1 K2_AFTER")
    for i in range(8): a(f"v_mov_b32 v{H+i}, 0")
    for i in range(8): a(f"v_mov_b32 v{OB+i}, 0")
    a("s_waitcnt vmcnt(5)")
    stamp(a,4)
    errs=0
    f=Fifo()
    pre=[]
    for b in range(4):
        if b&1: pre.append(f"v_xor_b32 v{G2P[b]+1}, 64, v{TMP}")
        else: pre.append(f"v_mov_b32 v{G2P[b]+1}, v{TMP}")
    pre.append(f"v_mov_b32 v{G2P[4]+1}, v{AX+1}")
    pre+=[rd_oal(0),rd_pa(0,0,0),rd_pa(1,0,0),add_oa(),rd_oa(0),rd_oa(1)]
    pre.append(("ds",f"ds_read_b32 v{G2P[4]}, v{TMP+3} offset:{2*128}",[G2P[4]]))
    for b in range(4): pre.append(("ds",f"ds_read_b32 v{G2P[b]}, v{TMP+2} offset:{2*128+b*32}",[G2P[b]]))
    mc=mchain(0,0,0)
    g2=[]
    for b in range(4):
        g2.append([f"s_add_u32 m0, s{sPM0}, {2*PSLOT+b*1024}","s_nop 0",f"buffer_load_dwordx4 v[{G2P[b]}:{G2P[b]+1}], s[{sP}:{sP+3}], 0 idxen offen lds"])
    g2.append([f"buffer_load_dwordx4 {vr(EFR[2],4)}, v[{G2P[4]}:{G2P[4]+1}], s[{sAUX}:{sAUX+3}], 0 idxen offen"])
    for k in range(5):
        pre.append(mc[k])
        if k<2: pre.append(rd_pa(k,1,0))
        pre+=g2[k]
    pre+=rd_idx(3)+[rd_oal(1)]
    pre=waits(pre,f)
    sm1=slot(2,1,f,"M1",X=True,R=False,M=True,Gp=False,rel=-1)
    pre=pre+["s_nop 7","s_nop 4"]
    for x_ in pre+sm1: a(x_)
    errs+=check(pre+sm1,"pre")
    a("s_waitcnt lgkmcnt(0)")
    a(f"s_mov_b32 s{sREM}, s{sNT}")
    if PRIO: a(f"s_setprio {OPT.get('prio0',3)}")
    f=Fifo();
    def iteration(f,emit):
        body=[]
        for p in range(3):
            hd=[f"s_cmp_eq_u32 s{sREM}, 1",f"s_cbranch_scc1 K2_TAIL{p}"]
            for (r,pr) in PRIO:
                hd+=[f"s_cmp_eq_u32 s{sREM}, {r}",f"s_cbranch_scc1 K2_PR{p}_{pr}",f"K2_PRB{p}_{pr}:"]
            sl=slot(p,0,f,f"L{p}")+slot(p,1,f,f"L{p}")
            body+=hd+sl+[f"s_sub_u32 s{sREM}, s{sREM}, 1"]
        return body
    iteration(f,False); q1=[set(x) for x in f.q]
    body=iteration(f,True); q2=[set(x) for x in f.q]
    assert q1==q2,(q1,q2)
    a("K2_LOOP:")
    for x_ in body: a(x_)
    a(f"v_add_u32 v{vLX}, 384, v{vLX}",f"v_add_u32 v{vLA}, 384, v{vLA}",f"v_add_u32 v{vLB}, 384, v{vLB}")
    a("s_branch K2_LOOP")
    errs+=check(sm1+body+body[:250],"loop")
    def w2load():
        a(f"v_and_b32 v{TMP+4}, 63, v0",f"s_lshl_b32 s42, s{sWAVE}, 14",f"v_lshl_add_u32 v{TMP+4}, v{TMP+4}, 4, s42")
        for f_ in range(16):
            if f_%4==0: a(f"s_mov_b32 s42, {WS_W2+(f_//4)*4096}")
            a(f"buffer_load_dwordx4 {vr(W2Q[f_],4)}, v{TMP+4}, s[{sWS}:{sWS+3}], s42 offen offset:{(f_%4)*1024}")
        a(f"s_mov_b32 s{sW2}, 1")
    for p in range(3):
        a(f"K2_TAIL{p}:")
        if PRIO: a("s_setprio 0")
        a("s_waitcnt lgkmcnt(0)")
        a(f"s_or_b32 s42, s{sF0}, s{sF0+1}",f"s_or_b32 s42, s42, s{sF1}","s_cmp_lg_u32 s42, 0",f"s_cbranch_scc1 K2_NOW2_{p}")
        w2load()
        a(f"K2_NOW2_{p}:")
        f=Fifo()
        ta=slot(p,0,f,"",M=False); tb=slot(p,1,f,"",X=False,M=False)
        for x_ in ta+tb: a(x_)
        a("s_nop 1"); a(G(1,1))
        errs+=check(body[-120:]+ta+tb+["s_nop 1",G(1,1)],"tail")
        if p<2: a("s_branch K2_AFTER")
    a("K2_AFTER:")
    stamp(a,5)
    a("s_waitcnt lgkmcnt(0)","s_barrier")
    a(f"s_or_b32 s42, s{sF0}, s{sF0+1}",f"s_or_b32 s42, s42, s{sF1}","s_cmp_lg_u32 s42, 0","s_cbranch_scc1 K2_SLOW")
    a(f"s_cmp_lg_u32 s{sW2}, 0","s_cbranch_scc1 K2_EPI")
    w2load()
    a("K2_EPI:")
    lane=TMP+5; Uo=U[0]; B2=T[0]
    a(f"v_and_b32 v{lane}, 63, v0")
    a(f"v_lshrrev_b32 v{TMP+6}, 5, v{lane}",f"s_lshl_b32 s42, s{sWAVE}, 7",f"v_lshl_add_u32 v{TMP+6}, v{TMP+6}, 6, s42",f"s_mov_b32 s42, {WS_B2}")
    for k in range(4): a(f"buffer_load_dwordx4 {vr(B2+4*k,4)}, v{TMP+6}, s[{sWS}:{sWS+3}], s42 offen offset:{16*k}")
    a(f"v_and_b32 v{TMP+7}, 31, v{lane}",f"v_lshlrev_b32 v{TMP+8}, 2, v{TMP+7}",f"ds_read_b32 v{TMP+9}, v{TMP+8} offset:{DEG}")
    a(f"s_mov_b32 s42, 0x{NEG_LN2:x}")
    a("s_nop 7")
    for i in range(32): a(f"v_mul_f32 v{S+i}, s42, v{S+i}")
    for j in range(16): a(f"v_cvt_pk_bf16_f32 v{Uo+j}, v{S+2*j}, v{S+2*j+1}")
    a(f"s_lshl_b32 s42, s{sWAVE}, 12",f"v_lshl_add_u32 v{TMP+8}, v{lane}, 4, s42")
    for k in range(4): a(f"ds_write_b128 v{TMP+8}, {vr(Uo+4*k,4)} offset:{EX+k*1024}")
    a("s_waitcnt lgkmcnt(0)","s_barrier")
    a(f"v_lshlrev_b32 v{TMP+8}, 4, v{lane}")
    for f_ in range(16): a(f"ds_read_b128 {vr(FRQ[f_],4)}, v{TMP+8} offset:{EX+f_*1024}")
    a(f"v_cvt_f32_u32 v{TMP+9}, v{TMP+9}")
    a("s_waitcnt vmcnt(0)")
    for i in range(16): a(f"v_mul_f32 v{Uo+i}, v{TMP+9}, v{B2+i}")
    a("s_nop 0")
    for f_ in range(16):
        a(f"s_waitcnt lgkmcnt({15-f_})")
        a(mfma(Uo,W2Q[f_],FRQ[f_],Uo))
    a(f"v_add_u32 v{TMP+8}, s{sSTART}, v{TMP+7}",f"v_lshlrev_b32 v{TMP+8}, 8, v{TMP+8}")
    a(f"v_lshrrev_b32 v{TMP+6}, 5, v{lane}",f"v_lshl_add_u32 v{TMP+8}, v{TMP+6}, 5, v{TMP+8}")
    a(f"s_lshl_b32 s42, s{sWAVE}, 6",f"v_add_u32 v{TMP+8}, s42, v{TMP+8}")
    a(f"v_cmp_gt_u32 vcc, s{sCOUNT}, v{TMP+7}",f"v_mov_b32 v{TMP+6}, 0x7f000000")
    a("s_nop 1")
    a(f"v_cndmask_b32 v{TMP+8}, v{TMP+6}, v{TMP+8}, vcc")
    a("s_nop 4")
    for j in range(8): a(f"v_cvt_pk_bf16_f32 v{H+j}, v{Uo+2*j}, v{Uo+2*j+1}")
    a(f"buffer_store_dwordx4 {vr(H,4)}, v{TMP+8}, s[{sOUT}:{sOUT+3}], 0 offen")
    a(f"buffer_store_dwordx4 {vr(H+4,4)}, v{TMP+8}, s[{sOUT}:{sOUT+3}], 0 offen offset:16")
    if PROF:
        stamp(a,6)
        PB=U[1]
        a("s_waitcnt lgkmcnt(0)")
        a(f"s_lshl_b32 s42, s{sB}, 2",f"s_add_u32 s42, s42, s{sWAVE}","s_lshl_b32 s42, s42, 6",f"s_add_u32 s42, s42, {WS_PROF}")
        for i in range(7): a(f"v_mov_b32 v{PB+i}, s{64+2*i}")
        a(f"v_mov_b32 v{PB+7}, s{sNT}")
        a(f"v_mov_b32 v{TMP}, 0")
        a("s_mov_b64 exec, 1")
        a(f"buffer_store_dwordx4 {vr(PB,4)}, v{TMP}, s[{sWS}:{sWS+3}], s42 offen")
        a(f"buffer_store_dwordx4 {vr(PB+4,4)}, v{TMP}, s[{sWS}:{sWS+3}], s42 offen offset:16")
        a("s_sub_u32 s92, s94, s92",f"v_mov_b32 v{PB+8}, s92")
        a(f"buffer_store_dword v{PB+8}, v{TMP}, s[{sWS}:{sWS+3}], s42 offen offset:32")
    a("s_waitcnt vmcnt(0)")
    a("s_endpgm")
    a("K2_SLOW:")
    a("s_waitcnt vmcnt(0)")
    cch=62
    a(f"s_ff1_i32_b64 s{cch}, s[{sF0}:{sF0+1}]",f"s_cmp_lg_u32 s{cch}, -1","s_cbranch_scc1 K2_SL1")
    a(f"s_ff1_i32_b32 s{cch}, s{sF1}",f"s_add_u32 s{cch}, s{cch}, 64")
    a("K2_SL1:")
    a(f"s_mul_i32 s63, s{cch}, 2000",f"s_mul_i32 s42, s{sHALF}, 1000","s_add_u32 s63, s63, s42")
    a(f"s_cmp_eq_u32 s{sHALF}, 0","s_cbranch_scc1 K2_SL2")
    a(f"s_cmp_ge_u32 s{cch}, 64","s_cbranch_scc1 K2_SL3")
    a(f"s_bitset0_b64 s[{sF0}:{sF0+1}], s{cch}","s_branch K2_SL2")
    a("K2_SL3:")
    a(f"s_sub_u32 s42, s{cch}, 64",f"s_bitset0_b32 s{sF1}, s42")
    a("K2_SL2:")
    a(f"s_xor_b32 s{sHALF}, s{sHALF}, 1")
    a("s_load_dwordx4 s[4:7], s[0:1], 16")
    for k in range(4): a(f"v_mov_b32 v{n4+k}, 0x{NULLI:x}")
    a(f"v_lshlrev_b32 v{tid16}, 4, v0")
    list_fill(a,tid16,n4,XF+28)
    a(f"v_mov_b32 v{z}, {CNT}",f"v_mov_b32 v{z+1}, 0",f"ds_write_b32 v{z}, v{z+1}")
    a("s_waitcnt lgkmcnt(0)")
    srd(a,24,4,640000); srd(a,28,6,640000)
    a("s_lshl_b32 s42, s63, 2")
    dv=XF+8; sv=XF+12
    a(f"buffer_load_dwordx4 {vr(dv,4)}, v{tid16}, s[28:31], s42 offen")
    a(f"buffer_load_dwordx4 {vr(sv,4)}, v{tid16}, s[24:27], s42 offen")
    a("s_barrier")
    a(f"s_mov_b32 s42, {MAGIC}","s_movk_i32 s43, 625")
    a("s_waitcnt vmcnt(0)")
    bk=XF+16
    for j in range(4):
        a(f"v_mul_u32_u24 v{bk+j}, s42, v{dv+j}",f"v_lshrrev_b32 v{bk+j}, 23, v{bk+j}")
    a("v_cmp_gt_u32 vcc, 250, v0","s_nop 0","s_mov_b64 s[54:55], vcc")
    def mg2(j):
        a(f"v_cmp_eq_u32_e64 s[{sMASK+2*j}:{sMASK+2*j+1}], s{sB}, v{bk+j}")
        a("s_nop 0")
        a(f"s_and_b64 s[{sMASK+2*j}:{sMASK+2*j+1}], s[{sMASK+2*j}:{sMASK+2*j+1}], s[54:55]")
    def fg2(j):
        a(f"v_mov_b32 v{tA}, v{sv+j}",f"v_subrev_u32 v{tB}, s{sSTART}, v{dv+j}",f"v_lshlrev_b32 v{tC}, 2, v0",f"v_add_u32 v{tC}, s63, v{tC}")
        if j: a(f"v_add_u32 v{tC}, {j}, v{tC}")
    compact(a,4,mg2,fg2,tP,tA,tB,tC,tOne,tz)
    a("s_waitcnt lgkmcnt(0)","s_barrier")
    read_n_flags(False)
    a(f"v_mov_b32 v{vLX}, v{TMP+2}",f"v_mov_b32 v{vLA}, v{TMP+3}",f"v_mov_b32 v{vLB}, v{TMP+1}")
    offs()
    idx_group(a,0,PI,AX); idx_group(a,1,G1P[:4],G1P[4])
    dma_group(a,0,PI,AX,wait=5)
    use_n_flags(False)
    dma_group(a,1,G1P[:4],G1P[4],wait=0)
    a("s_branch K2_PIPE")
    if PRIO:
        for p in range(3):
            for (r,pr) in PRIO:
                a(f"K2_PR{p}_{pr}:",f"s_setprio {pr}",f"s_branch K2_PRB{p}_{pr}")
    a("K2_EXIT:")
    a("s_endpgm")
    print("hazard errors:",errs,file=sys.stderr)
    return a

def kd(name,vgpr,sgpr=96):
    return f""".amdhsa_kernel {name}
  .amdhsa_next_free_vgpr {vgpr}
  .amdhsa_next_free_sgpr {sgpr}
  .amdhsa_accum_offset {(vgpr+3)//4*4}
  .amdhsa_group_segment_fixed_size 0
  .amdhsa_kernarg_size 88
  .amdhsa_user_sgpr_count 2
  .amdhsa_user_sgpr_kernarg_segment_ptr 1
  .amdhsa_system_sgpr_workgroup_id_x 1
.end_amdhsa_kernel
"""
HDR=open("standalone__edge_featured_mpnn_mpnn__graph.s.ref").read().split("; Override")[0]
def full():
    o=HDR
    o+=f"; @launch kernel=k1_bin_prep_kernel grid=({K1N},1,1) block=(512,1,1) lds={LDS1}\n"
    o+=f"; @launch kernel=k2_main_kernel grid=(512,1,1) block=(256,1,1) lds={LDS2}\n"
    o+='.amdgcn_target "amdgcn-amd-amdhsa--gfx950"\n.text\n'
    for nm,g in (("k1_bin_prep_kernel",g4k1.gen_k1(OPT.get('smod',''),OPT.get('lmod',''),OPT.get('srcmask'),PROF)),("k2_main_kernel",gen_k2())):
        o+=f".globl {nm}\n.p2align 8\n.type {nm},@function\n"+g.text()
    o+='.section .rodata,"a"\n'
    o+=".p2align 6\n"+kd("k1_bin_prep_kernel",152,40)
    o+=".p2align 6\n"+kd("k2_main_kernel",256,96)
    return o
if __name__=="__main__":
    open(sys.argv[1],"w").write(full())
    print("K1N",K1N,"LDS1",LDS1,"LDS2",LDS2)
```

```python
import sys
from gen import *
from g4k1 import *
from g5k2 import *
import g5k2, g4k1

PROF=int(sys.argv[2]) if len(sys.argv)>2 else 0
OPT=eval(sys.argv[3]) if len(sys.argv)>3 else {}
CFG.update(OPT.get('cfg',{}))
PRIO=OPT.get('prio',[])
WS_PROF=WS_TOT4
WS_TOT=WS_TOT4+512*4*64

def stamp(a,i):
    if not PROF: return
    if PROF==1: a(f"s_memtime s[{64+2*i}:{65+2*i}]")
    else: a(f"s_memrealtime s[{64+2*i}:{65+2*i}]")
    if PROF==2 and i==4: a("s_memtime s[92:93]")
    if PROF==2 and i==5: a("s_memtime s[94:95]")

G1P=[T[2]+2*k for k in range(5)]
G2P=[XF+2*k for k in range(5)]
PFK=OPT.get('pfk',0); PFS=OPT.get('pfs',128)
def dma_group(a,g,prs,ax,wait=True):
    for b in range(4):
        a(f"s_add_u32 m0, s{sPM0}, {g*PSLOT+b*1024}")
        if b==0 and wait is not None: a(f"s_waitcnt lgkmcnt({wait})")
        else: a("s_nop 0")
        a(f"buffer_load_dwordx4 v[{prs[b]}:{prs[b]+1}], s[{sP}:{sP+3}], 0 idxen offen lds")
    a(f"buffer_load_dwordx4 {vr(EFR[g],4)}, v[{ax}:{ax+1}], s[{sAUX}:{sAUX+3}], 0 idxen offen")
def idx_group(a,g,prs,ax):
    a(f"ds_read_b32 v{ax}, v{TMP+3} offset:{g*128}")
    for b in range(4): a(f"ds_read_b32 v{prs[b]}, v{TMP+2} offset:{g*128+b*32}")
def list_fill(a,tid16,vnull4,vz4):
    for k in range(4): a(f"v_mov_b32 v{vz4+k}, {ZROW}")
    for i in range(2): a(f"ds_write_b128 v{tid16}, {vr(vnull4,4)} offset:{LS+i*4096}")
    a(f"ds_write_b128 v{tid16}, {vr(vz4,4)} offset:{LD}")
    a(f"v_cmp_gt_u32 vcc, {192*16}, v{tid16}")
    a("s_and_saveexec_b64 s[42:43], vcc")
    a(f"ds_write_b128 v{tid16}, {vr(vnull4,4)} offset:{LS+8192}")
    a("s_mov_b64 exec, s[42:43]")
    a(f"v_cmp_gt_u32 vcc, {96*16}, v{tid16}")
    a("s_and_saveexec_b64 s[42:43], vcc")
    a(f"ds_write_b128 v{tid16}, {vr(vz4,4)} offset:{LD+4096}")
    a("s_mov_b64 exec, s[42:43]")

def compact(a,nc,maskgen,fieldgen,tP,tA,tB,tC,tOne,tz):
    for j in range(nc): maskgen(j)
    a("s_nop 0")
    a(f"s_bcnt1_i32_b64 s{sT}, s[{sMASK}:{sMASK+1}]")
    for j in range(1,nc):
        a(f"s_bcnt1_i32_b64 s{sT+1}, s[{sMASK+2*j}:{sMASK+2*j+1}]",f"s_add_u32 s{sT}, s{sT}, s{sT+1}")
    a(f"v_mov_b32 v{tA}, s{sT}",f"v_mov_b32 v{tz}, {CNT}",f"v_mov_b32 v{tOne}, 1")
    a("s_mov_b64 exec, 1")
    a(f"ds_add_rtn_u32 v{tB}, v{tz}, v{tA}")
    a("s_waitcnt lgkmcnt(0)")
    a("s_mov_b64 exec, -1")
    a(f"v_readfirstlane_b32 s{sT}, v{tB}")
    for j in range(nc):
        a(f"v_mbcnt_lo_u32_b32 v{tP}, s{sMASK+2*j}, 0")
        a(f"v_mbcnt_hi_u32_b32 v{tP}, s{sMASK+2*j+1}, v{tP}")
        fieldgen(j)
        a(f"v_add_u32 v{tP}, s{sT}, v{tP}")
        a(f"v_lshlrev_b32 v{tP}, 2, v{tP}")
        a(f"v_lshlrev_b32 v{tz}, 2, v{tB}")
        a(f"v_mul_u32_u24 v{tB}, {TRS}, v{tB}",f"v_add_u32 v{tB}, {TBL}, v{tB}")
        a(f"s_mov_b64 exec, s[{sMASK+2*j}:{sMASK+2*j+1}]")
        a(f"ds_write_b32 v{tP}, v{tA} offset:{LS}")
        a(f"ds_write_b32 v{tP}, v{tC} offset:{LE}")
        a(f"ds_write_b32 v{tP}, v{tB} offset:{LD}")
        a(f"ds_add_u32 v{tz}, v{tOne} offset:{DEG}")
        a("s_mov_b64 exec, -1")
        if j<nc-1:
            a(f"s_bcnt1_i32_b64 s{sT+1}, s[{sMASK+2*j}:{sMASK+2*j+1}]",f"s_add_u32 s{sT}, s{sT}, s{sT+1}")

W2Q=[XF+4*k for k in range(9)]+[PA,PA+4,EFR[0],OA,OA+4,W1E,W1E+4]
FRQ=[S+4*k for k in range(8)]+[T[1]+4*k for k in range(4)]+[T[2]+4*k for k in range(4)]

def gen_k2():
    a=A()
    a("k2_main_kernel:")
    a("s_cmp_ge_u32 s2, 512","s_cbranch_scc1 K2_EXIT")
    if OPT.get('pstart') is not None: a(f"s_setprio {OPT['pstart']}")
    a("s_load_dwordx2 s[28:29], s[0:1], 80")
    a("s_load_dwordx4 s[4:7], s[0:1], 0")
    a("s_load_dwordx2 s[24:25], s[0:1], 64")
    stamp(a,0)
    t0=TMP+4
    a(f"v_lshrrev_b32 v{t0}, 6, v0")
    a(f"v_and_b32 v{t0+1}, 63, v0")
    a(f"v_readfirstlane_b32 s{sWAVE}, v{t0}")
    L=t0+1
    a(f"s_mov_b32 s{sB}, s2")
    n4=XF; tid16=XF+4; z=XF+5
    a(f"v_lshlrev_b32 v{tid16}, 4, v0",f"v_lshlrev_b32 v{z}, 2, v0")
    Ls=XF+13
    a(f"v_mov_b32 v{Ls}, v{L}")
    ent=t0
    a(f"s_mul_i32 s42, s{sB}, 5120",f"s_add_u32 s42, s42, {WS_LIST}","s_add_u32 s43, s42, 4096")
    a("s_waitcnt lgkmcnt(0)")
    srd(a,sWS,28,WS_TOT)
    a(f"buffer_load_dwordx4 {vr(ent,4)}, v{tid16}, s[{sWS}:{sWS+3}], s42 offen")
    a(f"buffer_load_dword v{ent+4}, v{z}, s[{sWS}:{sWS+3}], s43 offen")
    L=Ls
    a(f"s_mul_i32 s{sSTART}, s2, 625",f"s_add_u32 s{sCOUNT}, s{sSTART}, {625+31}",f"s_add_u32 s{sSTART}, s{sSTART}, 31")
    a(f"s_lshr_b32 s{sSTART}, s{sSTART}, 5",f"s_lshr_b32 s{sCOUNT}, s{sCOUNT}, 5",f"s_sub_u32 s{sCOUNT}, s{sCOUNT}, s{sSTART}")
    e=XF+8; h=XF+9; u=XF+10; w=XF+11; x=XF+12
    a(f"v_lshrrev_b32 v{u}, 4, v{L}")
    a(f"v_and_b32 v{x}, 15, v{L}",f"v_xor_b32 v{x}, v{x}, v{u}",f"v_lshlrev_b32 v{PI[0]+1}, 4, v{x}",f"v_mov_b32 v{PI[1]+1}, v{PI[0]+1}")
    a(f"s_lshl_b32 s42, s{sWAVE}, 3")
    a(f"v_add_u32 v{x}, s42, v{u}")
    a(f"v_and_b32 v{w}, 8, v{x}",f"v_lshrrev_b32 v{w}, 1, v{w}",f"v_and_b32 v{x}, 0x13, v{x}",f"v_or_b32 v{x}, v{x}, v{w}")
    a(f"v_add_u32 v{w}, 8, v{x}")
    a(f"v_mov_b32 v{e}, 0x{NULLI:x}")
    for (reg,dstp) in ((x,PI[0]),(w,PI[1])):
        a(f"v_cmp_gt_u32 vcc, s{sCOUNT}, v{reg}")
        a(f"v_add_u32 v{reg}, s{sSTART}, v{reg}")
        a("s_nop 0")
        a(f"v_cndmask_b32 v{dstp}, v{e}, v{reg}, vcc")
    srd(a,sX,4,10000,256)
    a(f"s_mul_i32 s42, s{sWAVE}, {2*XBLK}",f"s_add_u32 m0, s42, {XO}")
    a(f"buffer_load_dwordx4 v[{PI[0]}:{PI[0]+1}], s[{sX}:{sX+3}], 0 idxen offen lds")
    a(f"s_add_u32 m0, s42, {XO+XBLK}","s_nop 0")
    a(f"buffer_load_dwordx4 v[{PI[1]}:{PI[1]+1}], s[{sX}:{sX+3}], 0 idxen offen lds")
    def wblock():
        wv=XF+14
        a(f"s_lshl_b32 s42, s{sWAVE}, 11",f"v_lshl_add_u32 v{wv}, v{L}, 4, s42")
        def wd_loads(order):
            for s in order:
                a(f"s_mov_b32 s42, {WS_W1+(8+s)*8192}")
                for c in range(2): a(f"buffer_load_dwordx4 {vr(WD+(c*8+s)*4,4)}, v{wv}, s[{sWS}:{sWS+3}], s42 offen offset:{c*1024}")
        if OPT.get('rev') is not None:
            a(f"s_bitcmp1_b32 s{sB}, {OPT['rev']}","s_cbranch_scc1 K2_REV")
            wd_loads(range(8))
            a("s_branch K2_REV2","K2_REV:")
            wd_loads(range(7,-1,-1))
            a("K2_REV2:")
        else: wd_loads(range(8))
        bq=XF+15
        a(f"v_and_b32 v{bq}, 31, v{L}",f"s_lshl_b32 s42, s{sWAVE}, 8",f"v_lshl_add_u32 v{bq}, v{bq}, 2, s42",f"s_mov_b32 s42, {WS_B1}")
        a(f"buffer_load_dword v{ent+5}, v{bq}, s[{sWS}:{sWS+3}], s42 offen")
        a(f"buffer_load_dword v{ent+6}, v{bq}, s[{sWS}:{sWS+3}], s42 offen offset:128")
        a(f"s_mov_b32 s42, {WS_W1+16*8192}")
        for c in range(2): a(f"buffer_load_dwordx4 {vr(W1E+4*c,4)}, v{wv}, s[{sWS}:{sWS+3}], s42 offen offset:{c*1024}")
        if PFK:
            pf=XF+6+1
            pf=XF+27
            a(f"s_lshr_b32 s42, s{sB}, 3",f"s_lshl_b32 s43, s42, 2",f"s_add_u32 s42, s43, s{sWAVE}")
            a(f"s_mul_i32 s42, s42, {PFK*64*PFS}",f"s_add_u32 s42, s42, {WS_P}")
            a(f"v_mul_u32_u24 v{pf}, {PFS}, v{L}") if PFS<=64 else a(f"v_lshlrev_b32 v{pf}, 7, v{L}")
            for k in range(PFK):
                a(f"buffer_load_dword v{240+(k&3)}, v{pf}, s[{sWS}:{sWS+3}], s42 offen")
                if k<PFK-1: a(f"s_add_u32 s42, s42, {64*PFS}")
    WDP=OPT.get('wdpos',0)
    if WDP==0: wblock()
    for k in range(4): a(f"v_mov_b32 v{n4+k}, 0x{NULLI:x}")
    list_fill(a,tid16,n4,XF+28)
    a(f"v_mov_b32 v{z+1}, 0")
    a(f"ds_write_b32 v{z}, v{z+1}")
    a(f"s_cmp_lg_u32 s{sWAVE}, 0","s_cbranch_scc1 K2_NOTBL")
    for k in range(4): a(f"v_mov_b32 v{XF+28+k}, 0")
    a(f"ds_write_b128 v{tid16}, {vr(XF+28,4)} offset:{TBL}")
    a(f"v_cmp_gt_u32 vcc, {48*16}, v{tid16}","s_and_saveexec_b64 s[42:43], vcc")
    a(f"ds_write_b128 v{tid16}, {vr(XF+28,4)} offset:{TBL+1024}")
    a("s_mov_b64 exec, s[42:43]")
    a(f"v_cmp_gt_u32 vcc, 20, v{L}","s_and_saveexec_b64 s[42:43], vcc")
    a(f"v_mul_u32_u24 v{XF+28}, {TRS+2}, v{L}",f"v_mov_b32 v{XF+29}, 0x3f80")
    a(f"ds_write_b16 v{XF+28}, v{XF+29} offset:{TBL}")
    a("s_mov_b64 exec, s[42:43]")
    a("K2_NOTBL:")
    if WDP==3: wblock()
    a(f"v_and_b32 v{e}, 31, v{L}",f"v_lshrrev_b32 v{h}, 5, v{L}")
    a(f"v_lshrrev_b32 v{u}, 2, v{e}")
    xa=[22,23]
    a(f"s_movk_i32 s42, {XBLK}")
    a(f"v_mul_u32_u24 v{w}, s42, v{u}")
    a(f"v_and_b32 v{x}, 3, v{e}")
    a(f"v_lshl_add_u32 v{w}, v{x}, 8, v{w}")
    a(f"v_xor_b32 v{x}, v{x}, v{h}")
    a(f"v_lshl_add_u32 v{w}, v{x}, 4, v{w}")
    a(f"v_add_u32 v{xa[0]}, {XO}, v{w}",f"v_xor_b32 v{xa[1]}, 32, v{xa[0]}")
    a(f"v_lshlrev_b32 v{vH16}, 4, v{h}")
    a(f"v_bfe_u32 v{x}, v{L}, 4, 1",f"v_lshlrev_b32 v{x}, 5, v{x}",f"v_and_b32 v{w}, 3, v{L}",f"v_lshl_add_u32 v{vOBo}, v{w}, 3, v{x}")
    a(f"v_bfe_u32 v{w}, v{L}, 2, 2",f"v_lshl_add_u32 v{w}, v{h}, 2, v{w}",f"v_lshlrev_b32 v{w}, 2, v{w}",f"v_add_u32 v{TMP+1}, {LD}, v{w}")
    a(f"s_lshl_b32 s42, s{sWAVE}, 12",f"s_add_u32 s{sPM0}, s42, {PR}")
    a(f"v_bfe_u32 v{x}, v{e}, 1, 3",f"v_xor_b32 v{x}, v{x}, v{h}",f"v_lshlrev_b32 v{x}, 4, v{x}",f"v_lshl_add_u32 v{x}, v{e}, 7, v{x}")
    a(f"v_add_u32 v{vPA[0]}, s{sPM0}, v{x}")
    for k in range(1,4): a(f"v_xor_b32 v{vPA[k]}, {32*k}, v{vPA[0]}")
    a(f"v_and_b32 v{x}, 7, v{L}",f"v_lshrrev_b32 v{w}, 4, v{L}",f"v_xor_b32 v{x}, v{x}, v{w}",f"v_lshlrev_b32 v{x}, 4, v{x}")
    a(f"s_lshl_b32 s42, s{sWAVE}, 7",f"v_add_u32 v{TMP}, s42, v{x}")
    a(f"v_lshrrev_b32 v{x}, 3, v{L}",f"v_lshlrev_b32 v{x}, 2, v{x}",f"v_add_u32 v{TMP+2}, {LS}, v{x}")
    a(f"v_lshlrev_b32 v{x}, 3, v{h}",f"v_sub_u32 v{x}, v{e}, v{x}")
    a(f"v_and_b32 v{w}, 1, v{x}",f"v_lshlrev_b32 v{w}, 4, v{w}",f"v_mov_b32 v{u}, 0x3f80",f"v_lshlrev_b32 v{w}, v{w}, v{u}")
    a(f"v_ashrrev_i32 v{x}, 1, v{x}")
    for k in range(8):
        a(f"v_cmp_eq_u32 vcc, {k if k<4 else k+4}, v{x}","s_nop 1",f"v_cndmask_b32 v{ID+k}, 0, v{w}, vcc")
    a(f"v_cmp_eq_u32 vcc, 0, v{h}","s_nop 1",f"v_cndmask_b32 v{ONE}, 0, v{u}, vcc")
    for k in range(1,4): a(f"v_mov_b32 v{ONE+k}, 0")
    srd(a,sOUT,24,2560000)
    a(f"s_add_u32 s{sP}, s28, {WS_P}",f"s_addc_u32 s{sP+1}, s29, 0",f"s_or_b32 s{sP+1}, s{sP+1}, 0x{512<<16:x}",f"s_mov_b32 s{sP+2}, 10000",f"s_mov_b32 s{sP+3}, 0x00020000")
    srd(a,sAUX,6,160000,32)
    a(f"v_lshlrev_b32 v{AX+1}, 4, v{h}")
    a(f"v_lshlrev_b32 v{x}, 2, v{e}",f"v_add_u32 v{TMP+3}, {LE}, v{x}")
    cb=XF+16; cb4=XF+17
    a("s_movk_i32 s42, 2000")
    a(f"v_lshrrev_b32 v{cb}, 2, v0",f"v_lshrrev_b32 v{cb4}, 4, v0",f"v_add_u32 v{cb4}, 64, v{cb4}")
    a(f"v_lshlrev_b32 v{XF+18}, 2, v{cb}",f"v_lshlrev_b32 v{XF+19}, 2, v{cb4}")
    a(f"v_mul_u32_u24 v{cb}, s42, v{cb}",f"v_mul_u32_u24 v{cb4}, s42, v{cb4}")
    if WDP==1: wblock()
    a("s_waitcnt lgkmcnt(0)","s_barrier")
    if WDP==2: wblock()
    a(f"s_waitcnt vmcnt({22+PFK})")
    stamp(a,1)
    for (er,fa,lab) in ((ent,XF+18,"A"),(ent+4,XF+19,"B")):
        a(f"v_cmp_eq_u32 vcc, -2, v{er}")
        a("s_and_saveexec_b64 s[42:43], vcc")
        a(f"v_mov_b32 v{XF+20}, 1")
        a(f"ds_write_b32 v{fa}, v{XF+20} offset:{FLG}")
        a("s_mov_b64 exec, s[42:43]")
    tP,tA,tB,tC,tOne,tz=XF+21,XF+22,XF+23,XF+24,XF+25,XF+26
    def mg(j): a(f"v_cmp_le_i32_e64 s[{sMASK+2*j}:{sMASK+2*j+1}], 0, v{ent+j}")
    def fg(j):
        a(f"v_and_b32 v{tA}, 0x3fff, v{ent+j}",f"v_bfe_u32 v{tB}, v{ent+j}, 14, 5",f"v_lshrrev_b32 v{tC}, 19, v{ent+j}",f"v_add_u32 v{tC}, v{tC}, v{cb if j<4 else cb4}")
    compact(a,5,mg,fg,tP,tA,tB,tC,tOne,tz)
    a(f"s_waitcnt vmcnt({20+PFK}) lgkmcnt(0)")
    a("s_barrier")
    stamp(a,2)
    def read_n_flags(flags):
        a(f"v_mov_b32 v{tz}, {CNT}",f"ds_read_b32 v{tA}, v{tz}")
        if flags:
            a(f"v_and_b32 v{tB}, 63, v0",f"v_lshlrev_b32 v{tB}, 2, v{tB}")
            a(f"ds_read_b32 v{tC}, v{tB} offset:{FLG}",f"ds_read_b32 v{tP}, v{tB} offset:{FLG+256}")
    def use_n_flags(flags):
        a(f"v_readfirstlane_b32 s{sN}, v{tA}")
        if flags:
            a(f"v_cmp_ne_u32_e64 s[{sF0}:{sF0+1}], 0, v{tC}")
            a(f"v_cmp_ne_u32_e64 s[42:43], 0, v{tP}")
            a("s_nop 0")
            a(f"s_and_b32 s{sF1}, s42, 0xffff")
            a(f"s_mov_b32 s{sHALF}, 0",f"s_mov_b32 s{sW2}, 0")
        a(f"s_add_u32 s{sNT}, s{sN}, 31",f"s_lshr_b32 s{sNT}, s{sNT}, 5")
    read_n_flags(True)
    def first_mid():
        pass
    a(f"v_mov_b32 v{vLX}, v{TMP+2}",f"v_mov_b32 v{vLA}, v{TMP+3}",f"v_mov_b32 v{vLB}, v{TMP+1}")
    def offs():
        for b in range(4):
            if b&1: a(f"v_xor_b32 v{PI[b]+1}, 64, v{TMP}",f"v_xor_b32 v{G1P[b]+1}, 64, v{TMP}")
            else: a(f"v_mov_b32 v{PI[b]+1}, v{TMP}",f"v_mov_b32 v{G1P[b]+1}, v{TMP}")
        a(f"v_mov_b32 v{G1P[4]+1}, v{AX+1}")
    offs()
    idx_group(a,0,PI,AX); idx_group(a,1,G1P[:4],G1P[4])
    dma_group(a,0,PI,AX,wait=5)
    use_n_flags(True)
    for s in range(8): a(f"ds_read_b128 {vr(XF+4*s,4)}, v{xa[s&1]} offset:{(s>>1)*64}")
    if OPT.get('st4')=='pre': stamp(a,4)
    a(f"s_waitcnt vmcnt({7+PFK})")
    if OPT.get('st4')=='w1d': stamp(a,4)
    for c in range(2):
        for i in range(16): a(f"v_mov_b32 v{T[c]+i}, v{ent+5+c}")
    a("s_waitcnt lgkmcnt(0)","s_barrier")
    if OPT.get('st4')=='bar3': stamp(a,4)
    for s in range(8):
        for c in range(2): a(mfma(T[c],XF+4*s,WD+(c*8+s)*4,T[c]))
        if s==OPT.get('g1s',3): dma_group(a,1,G1P[:4],G1P[4],wait=None)
    a("s_nop 7","s_nop 3")
    for c in range(2):
        for j in range(8): a(f"v_cvt_pk_bf16_f32 v{QF+8*c+j}, v{T[c]+2*j}, v{T[c]+2*j+1}")
    for i in range(32): a(f"v_mov_b32 v{S+i}, 0")
    stamp(a,3)
    a("K2_PIPE:")
    a(f"s_cmp_eq_u32 s{sNT}, 0","s_cbranch_scc1 K2_AFTER")
    for i in range(8): a(f"v_mov_b32 v{H+i}, 0")
    for i in range(8): a(f"v_mov_b32 v{OB+i}, 0")
    a("s_waitcnt vmcnt(5)")
    if not OPT.get('st4'): stamp(a,4)
    errs=0
    f=Fifo()
    pre=[]
    for b in range(4):
        if b&1: pre.append(f"v_xor_b32 v{G2P[b]+1}, 64, v{TMP}")
        else: pre.append(f"v_mov_b32 v{G2P[b]+1}, v{TMP}")
    pre.append(f"v_mov_b32 v{G2P[4]+1}, v{AX+1}")
    pre+=[rd_oal(0),rd_pa(0,0,0),rd_pa(1,0,0),add_oa(),rd_oa(0),rd_oa(1)]
    pre.append(("ds",f"ds_read_b32 v{G2P[4]}, v{TMP+3} offset:{2*128}",[G2P[4]]))
    for b in range(4): pre.append(("ds",f"ds_read_b32 v{G2P[b]}, v{TMP+2} offset:{2*128+b*32}",[G2P[b]]))
    mc=mchain(0,0,0)
    g2=[]
    for b in range(4):
        g2.append([f"s_add_u32 m0, s{sPM0}, {2*PSLOT+b*1024}","s_nop 0",f"buffer_load_dwordx4 v[{G2P[b]}:{G2P[b]+1}], s[{sP}:{sP+3}], 0 idxen offen lds"])
    g2.append([f"buffer_load_dwordx4 {vr(EFR[2],4)}, v[{G2P[4]}:{G2P[4]+1}], s[{sAUX}:{sAUX+3}], 0 idxen offen"])
    for k in range(5):
        pre.append(mc[k])
        if k<2: pre.append(rd_pa(k,1,0))
        pre+=g2[k]
    pre+=rd_idx(3)+[rd_oal(1)]
    pre=waits(pre,f)
    sm1=slot(2,1,f,"M1",X=True,R=False,M=True,Gp=False,rel=-1)
    pre=pre+["s_nop 7","s_nop 4"]
    for x_ in pre+sm1: a(x_)
    errs+=check(pre+sm1,"pre")
    a("s_waitcnt lgkmcnt(0)")
    a(f"s_mov_b32 s{sREM}, s{sNT}")
    if PRIO: a(f"s_setprio {OPT.get('prio0',3)}")
    f=Fifo();
    def iteration(f,emit):
        body=[]
        for p in range(3):
            hd=[f"s_cmp_eq_u32 s{sREM}, 1",f"s_cbranch_scc1 K2_TAIL{p}"]
            for (r,pr) in PRIO:
                hd+=[f"s_cmp_eq_u32 s{sREM}, {r}",f"s_cbranch_scc1 K2_PR{p}_{pr}",f"K2_PRB{p}_{pr}:"]
            sl=slot(p,0,f,f"L{p}")+slot(p,1,f,f"L{p}")
            body+=hd+sl+[f"s_sub_u32 s{sREM}, s{sREM}, 1"]
        return body
    iteration(f,False); q1=[set(x) for x in f.q]
    body=iteration(f,True); q2=[set(x) for x in f.q]
    assert q1==q2,(q1,q2)
    a("K2_LOOP:")
    for x_ in body: a(x_)
    a(f"v_add_u32 v{vLX}, 384, v{vLX}",f"v_add_u32 v{vLA}, 384, v{vLA}",f"v_add_u32 v{vLB}, 384, v{vLB}")
    a("s_branch K2_LOOP")
    errs+=check(sm1+body+body[:250],"loop")
    def w2load():
        a(f"v_and_b32 v{TMP+4}, 63, v0",f"s_lshl_b32 s42, s{sWAVE}, 14",f"v_lshl_add_u32 v{TMP+4}, v{TMP+4}, 4, s42")
        for f_ in range(16):
            if f_%4==0: a(f"s_mov_b32 s42, {WS_W2+(f_//4)*4096}")
            a(f"buffer_load_dwordx4 {vr(W2Q[f_],4)}, v{TMP+4}, s[{sWS}:{sWS+3}], s42 offen offset:{(f_%4)*1024}")
        a(f"v_and_b32 v{TMP+6}, 63, v0",f"v_lshrrev_b32 v{TMP+6}, 5, v{TMP+6}",f"s_lshl_b32 s42, s{sWAVE}, 7",f"v_lshl_add_u32 v{TMP+6}, v{TMP+6}, 6, s42",f"s_mov_b32 s42, {WS_B2}")
        for k in range(4): a(f"buffer_load_dwordx4 {vr(QF+4*k,4)}, v{TMP+6}, s[{sWS}:{sWS+3}], s42 offen offset:{16*k}")
        a(f"s_mov_b32 s{sW2}, 1")
    for p in range(3):
        a(f"K2_TAIL{p}:")
        if PRIO: a("s_setprio 0")
        a("s_waitcnt lgkmcnt(0)")
        a(f"s_or_b32 s42, s{sF0}, s{sF0+1}",f"s_or_b32 s42, s42, s{sF1}","s_cmp_lg_u32 s42, 0",f"s_cbranch_scc1 K2_NOW2_{p}")
        w2load()
        a(f"K2_NOW2_{p}:")
        f=Fifo()
        ta=slot(p,0,f,"",M=False); tb=slot(p,1,f,"",X=False,M=False)
        for x_ in ta+tb: a(x_)
        a("s_nop 1"); a(G(1,1))
        errs+=check(body[-120:]+ta+tb+["s_nop 1",G(1,1)],"tail")
        if p<2: a("s_branch K2_AFTER")
    a("K2_AFTER:")
    stamp(a,5)
    a("s_waitcnt lgkmcnt(0)","s_barrier")
    a(f"s_or_b32 s42, s{sF0}, s{sF0+1}",f"s_or_b32 s42, s42, s{sF1}","s_cmp_lg_u32 s42, 0","s_cbranch_scc1 K2_SLOW")
    a(f"s_cmp_lg_u32 s{sW2}, 0","s_cbranch_scc1 K2_EPI")
    w2load()
    a("K2_EPI:")
    lane=TMP+5; Uo=U[0]; B2=QF
    a(f"v_and_b32 v{lane}, 63, v0")
    a(f"v_and_b32 v{TMP+7}, 31, v{lane}",f"v_lshlrev_b32 v{TMP+8}, 2, v{TMP+7}",f"ds_read_b32 v{TMP+9}, v{TMP+8} offset:{DEG}")
    a(f"s_mov_b32 s42, 0x{NEG_LN2:x}")
    a("s_nop 7")
    for i in range(32): a(f"v_mul_f32 v{S+i}, s42, v{S+i}")
    for j in range(16): a(f"v_cvt_pk_bf16_f32 v{Uo+j}, v{S+2*j}, v{S+2*j+1}")
    a(f"s_lshl_b32 s42, s{sWAVE}, 12",f"v_lshl_add_u32 v{TMP+8}, v{lane}, 4, s42")
    for k in range(4): a(f"ds_write_b128 v{TMP+8}, {vr(Uo+4*k,4)} offset:{EX+k*1024}")
    a("s_waitcnt lgkmcnt(0)","s_barrier")
    a(f"v_lshlrev_b32 v{TMP+8}, 4, v{lane}")
    for f_ in range(16): a(f"ds_read_b128 {vr(FRQ[f_],4)}, v{TMP+8} offset:{EX+f_*1024}")
    a(f"v_cvt_f32_u32 v{TMP+9}, v{TMP+9}")
    a("s_waitcnt vmcnt(0)")
    for i in range(16): a(f"v_mul_f32 v{Uo+i}, v{TMP+9}, v{B2+i}")
    a("s_nop 0")
    for f_ in range(16):
        a(f"s_waitcnt lgkmcnt({15-f_})")
        a(mfma(Uo,W2Q[f_],FRQ[f_],Uo))
    a(f"v_add_u32 v{TMP+8}, s{sSTART}, v{TMP+7}",f"v_lshlrev_b32 v{TMP+8}, 8, v{TMP+8}")
    a(f"v_lshrrev_b32 v{TMP+6}, 5, v{lane}",f"v_lshl_add_u32 v{TMP+8}, v{TMP+6}, 5, v{TMP+8}")
    a(f"s_lshl_b32 s42, s{sWAVE}, 6",f"v_add_u32 v{TMP+8}, s42, v{TMP+8}")
    a(f"v_cmp_gt_u32 vcc, s{sCOUNT}, v{TMP+7}",f"v_mov_b32 v{TMP+6}, 0x7f000000")
    a("s_nop 1")
    a(f"v_cndmask_b32 v{TMP+8}, v{TMP+6}, v{TMP+8}, vcc")
    a("s_nop 4")
    for j in range(8): a(f"v_cvt_pk_bf16_f32 v{H+j}, v{Uo+2*j}, v{Uo+2*j+1}")
    a(f"buffer_store_dwordx4 {vr(H,4)}, v{TMP+8}, s[{sOUT}:{sOUT+3}], 0 offen")
    a(f"buffer_store_dwordx4 {vr(H+4,4)}, v{TMP+8}, s[{sOUT}:{sOUT+3}], 0 offen offset:16")
    if PROF:
        stamp(a,6)
        PB=U[1]
        a("s_waitcnt lgkmcnt(0)")
        a(f"s_lshl_b32 s42, s{sB}, 2",f"s_add_u32 s42, s42, s{sWAVE}","s_lshl_b32 s42, s42, 6",f"s_add_u32 s42, s42, {WS_PROF}")
        for i in range(7): a(f"v_mov_b32 v{PB+i}, s{64+2*i}")
        a(f"v_mov_b32 v{PB+7}, s{sNT}")
        a(f"v_mov_b32 v{TMP}, 0")
        a("s_mov_b64 exec, 1")
        a(f"buffer_store_dwordx4 {vr(PB,4)}, v{TMP}, s[{sWS}:{sWS+3}], s42 offen")
        a(f"buffer_store_dwordx4 {vr(PB+4,4)}, v{TMP}, s[{sWS}:{sWS+3}], s42 offen offset:16")
        a("s_sub_u32 s92, s94, s92",f"v_mov_b32 v{PB+8}, s92")
        a(f"buffer_store_dword v{PB+8}, v{TMP}, s[{sWS}:{sWS+3}], s42 offen offset:32")
    a("s_waitcnt vmcnt(0)")
    a("s_endpgm")
    a("K2_SLOW:")
    a("s_waitcnt vmcnt(0)")
    cch=62
    a(f"s_ff1_i32_b64 s{cch}, s[{sF0}:{sF0+1}]",f"s_cmp_lg_u32 s{cch}, -1","s_cbranch_scc1 K2_SL1")
    a(f"s_ff1_i32_b32 s{cch}, s{sF1}",f"s_add_u32 s{cch}, s{cch}, 64")
    a("K2_SL1:")
    a(f"s_mul_i32 s63, s{cch}, 2000",f"s_mul_i32 s42, s{sHALF}, 1000","s_add_u32 s63, s63, s42")
    a(f"s_cmp_eq_u32 s{sHALF}, 0","s_cbranch_scc1 K2_SL2")
    a(f"s_cmp_ge_u32 s{cch}, 64","s_cbranch_scc1 K2_SL3")
    a(f"s_bitset0_b64 s[{sF0}:{sF0+1}], s{cch}","s_branch K2_SL2")
    a("K2_SL3:")
    a(f"s_sub_u32 s42, s{cch}, 64",f"s_bitset0_b32 s{sF1}, s42")
    a("K2_SL2:")
    a(f"s_xor_b32 s{sHALF}, s{sHALF}, 1")
    a("s_load_dwordx4 s[4:7], s[0:1], 16")
    for k in range(4): a(f"v_mov_b32 v{n4+k}, 0x{NULLI:x}")
    a(f"v_lshlrev_b32 v{tid16}, 4, v0")
    list_fill(a,tid16,n4,XF+28)
    a(f"v_mov_b32 v{z}, {CNT}",f"v_mov_b32 v{z+1}, 0",f"ds_write_b32 v{z}, v{z+1}")
    a("s_waitcnt lgkmcnt(0)")
    srd(a,24,4,640000); srd(a,28,6,640000)
    a("s_lshl_b32 s42, s63, 2")
    dv=XF+8; sv=XF+12
    a(f"buffer_load_dwordx4 {vr(dv,4)}, v{tid16}, s[28:31], s42 offen")
    a(f"buffer_load_dwordx4 {vr(sv,4)}, v{tid16}, s[24:27], s42 offen")
    a("s_barrier")
    a(f"s_mov_b32 s42, {MAGIC}","s_movk_i32 s43, 625")
    a("s_waitcnt vmcnt(0)")
    bk=XF+16
    for j in range(4):
        a(f"v_mul_u32_u24 v{bk+j}, s42, v{dv+j}",f"v_lshrrev_b32 v{bk+j}, 23, v{bk+j}")
    a("v_cmp_gt_u32 vcc, 250, v0","s_nop 0","s_mov_b64 s[54:55], vcc")
    def mg2(j):
        a(f"v_cmp_eq_u32_e64 s[{sMASK+2*j}:{sMASK+2*j+1}], s{sB}, v{bk+j}")
        a("s_nop 0")
        a(f"s_and_b64 s[{sMASK+2*j}:{sMASK+2*j+1}], s[{sMASK+2*j}:{sMASK+2*j+1}], s[54:55]")
    def fg2(j):
        a(f"v_mov_b32 v{tA}, v{sv+j}",f"v_subrev_u32 v{tB}, s{sSTART}, v{dv+j}",f"v_lshlrev_b32 v{tC}, 2, v0",f"v_add_u32 v{tC}, s63, v{tC}")
        if j: a(f"v_add_u32 v{tC}, {j}, v{tC}")
    compact(a,4,mg2,fg2,tP,tA,tB,tC,tOne,tz)
    a("s_waitcnt lgkmcnt(0)","s_barrier")
    read_n_flags(False)
    a(f"v_mov_b32 v{vLX}, v{TMP+2}",f"v_mov_b32 v{vLA}, v{TMP+3}",f"v_mov_b32 v{vLB}, v{TMP+1}")
    offs()
    idx_group(a,0,PI,AX); idx_group(a,1,G1P[:4],G1P[4])
    dma_group(a,0,PI,AX,wait=5)
    use_n_flags(False)
    dma_group(a,1,G1P[:4],G1P[4],wait=0)
    a("s_branch K2_PIPE")
    if PRIO:
        for p in range(3):
            for (r,pr) in PRIO:
                a(f"K2_PR{p}_{pr}:",f"s_setprio {pr}",f"s_branch K2_PRB{p}_{pr}")
    a("K2_EXIT:")
    a("s_endpgm")
    print("hazard errors:",errs,file=sys.stderr)
    return a

def kd(name,vgpr,sgpr=96):
    return f""".amdhsa_kernel {name}
  .amdhsa_next_free_vgpr {vgpr}
  .amdhsa_next_free_sgpr {sgpr}
  .amdhsa_accum_offset {(vgpr+3)//4*4}
  .amdhsa_group_segment_fixed_size 0
  .amdhsa_kernarg_size 88
  .amdhsa_user_sgpr_count 2
  .amdhsa_user_sgpr_kernarg_segment_ptr 1
  .amdhsa_system_sgpr_workgroup_id_x 1
.end_amdhsa_kernel
"""
HDR=open("standalone__edge_featured_mpnn_mpnn__graph.s.ref").read().split("; Override")[0]
def full():
    o=HDR
    o+=f"; @launch kernel=k1_bin_prep_kernel grid=({K1N},1,1) block=(512,1,1) lds={LDS1}\n"
    o+=f"; @launch kernel=k2_main_kernel grid=(512,1,1) block=(256,1,1) lds={LDS2}\n"
    o+='.amdgcn_target "amdgcn-amd-amdhsa--gfx950"\n.text\n'
    for nm,g in (("k1_bin_prep_kernel",g4k1.gen_k1(OPT.get('smod',''),OPT.get('lmod',''),OPT.get('srcmask'),PROF)),("k2_main_kernel",gen_k2())):
        o+=f".globl {nm}\n.p2align 8\n.type {nm},@function\n"+g.text()
    o+='.section .rodata,"a"\n'
    o+=".p2align 6\n"+kd("k1_bin_prep_kernel",152,40)
    o+=".p2align 6\n"+kd("k2_main_kernel",256,96)
    return o
if __name__=="__main__":
    open(sys.argv[1],"w").write(full())
    print("K1N",K1N,"LDS1",LDS1,"LDS2",LDS2)
```

```python
from gen import *
WS_P=WS_END
NG=157
K1N=NCH+NG+18
LDS1=81920
WS_TOT4=WS_P+5120000
K1OPT={}
STORE_MOD=""

def gen_k1(store_mod="", list_mod="", srcmask=None, prof=0):
    a=A()
    a("k1_bin_prep_kernel:")
    a(f"s_cmp_ge_u32 s2, {K1N}")
    a("s_cbranch_scc1 K1_EXIT")
    a("s_load_dwordx2 s[4:5], s[0:1], 80")
    if prof: a("s_memrealtime s[36:37]")
    a(f"s_cmp_ge_u32 s2, {NCH}")
    a("s_cbranch_scc1 K1_NOBIN")
    a("s_load_dwordx4 s[8:11], s[0:1], 16")
    EPF=K1OPT.get('epf',0)
    if EPF in (1,2): a("s_load_dwordx2 s[40:41], s[0:1], 8")
    a("v_lshlrev_b32 v1, 4, v0")
    a("v_mov_b32 v4, -1","v_mov_b32 v5, -1","v_mov_b32 v6, -1","v_mov_b32 v7, -1")
    a("v_lshlrev_b32 v2, 2, v0","v_mov_b32 v3, 0")
    for i in range(4): a(f"ds_write_b128 v1, v[4:7] offset:{i*8192}")
    a("ds_write_b32 v2, v3 offset:32768")
    a("s_mul_i32 s3, s2, 8000")
    a("s_waitcnt lgkmcnt(0)")
    a("s_add_u32 s12, s8, s3","s_addc_u32 s13, s9, 0","s_mov_b32 s14, 8000","s_mov_b32 s15, 0x00020000")
    a("s_add_u32 s16, s10, s3","s_addc_u32 s17, s11, 0","s_mov_b32 s18, 8000","s_mov_b32 s19, 0x00020000")
    a("buffer_load_dwordx4 v[8:11], v1, s[16:19], 0 offen")
    a("buffer_load_dwordx4 v[12:15], v1, s[12:15], 0 offen")
    def epf_bin():
        a("s_mul_i32 s44, s2, 64000","s_add_u32 s40, s40, s44","s_addc_u32 s41, s41, 0","s_mov_b32 s42, 64000","s_mov_b32 s43, 0x00020000")
        a("v_lshlrev_b32 v91, 4, v0")
        for k in range(8):
            a(f"v_add_u32 v{92+k}, {k*8192}, v91",f"buffer_load_dwordx4 v[{100+4*k}:{103+4*k}], v{92+k}, s[40:43], 0 offen")
    if EPF==1:
        a("s_mul_i32 s44, s2, 64000","s_add_u32 s40, s40, s44","s_addc_u32 s41, s41, 0","s_mov_b32 s42, 64000","s_mov_b32 s43, 0x00020000")
        for k in range(8):
            a(f"v_add_u32 v{92+k}, {k*8192}, v1",f"buffer_load_dwordx4 v[{100+4*k}:{103+4*k}], v{92+k}, s[40:43], 0 offen")
    srd(a,20,4,WS_END)
    a(f"s_mov_b32 s24, {MAGIC}","s_movk_i32 s25, 625")
    a("s_barrier")
    a("v_cmp_gt_u32 vcc, 500, v0")
    a("s_and_saveexec_b64 s[26:27], vcc")
    a("s_cbranch_execz K1_BIN_SKIP")
    a("v_mov_b32 v3, 1")
    a(f"s_waitcnt vmcnt({1+8*(EPF==1)})")
    for j in range(4): a(f"v_mul_u32_u24 v{16+j}, s24, v{8+j}")
    for j in range(4): a(f"v_lshrrev_b32 v{16+j}, 23, v{16+j}")
    for j in range(4): a(f"v_lshlrev_b32 v{20+j}, 2, v{16+j}")
    for j in range(4): a(f"ds_add_rtn_u32 v{24+j}, v{20+j}, v3 offset:32768")
    for j in range(4): a(f"v_mad_u32_u24 v{28+j}, v{16+j}, s25, 31")
    for j in range(4): a(f"v_lshrrev_b32 v{28+j}, 5, v{28+j}")
    for j in range(4): a(f"v_sub_u32 v{28+j}, v{8+j}, v{28+j}")
    a("v_lshlrev_b32 v2, 21, v0")
    a(f"s_waitcnt vmcnt({8*(EPF==1)})")
    if srcmask is not None:
        for j in range(4): a(f"v_and_b32 v{12+j}, {srcmask}, v{12+j}")
    for j in range(4): a(f"v_lshl_or_b32 v{28+j}, v{28+j}, 14, v{12+j}")
    for j in range(4):
        a(f"v_or_b32 v{28+j}, v{28+j}, v2")
        if j: a(f"v_add_u32 v{28+j}, {j<<19}, v{28+j}")
    for j in range(4): a(f"v_lshlrev_b32 v{16+j}, 6, v{16+j}")
    a("v_mov_b32 v3, 34816")
    a("s_waitcnt lgkmcnt(0)")
    for j in range(4):
        a(f"v_lshl_add_u32 v{16+j}, v{24+j}, 2, v{16+j}")
        a(f"v_cmp_gt_u32 vcc, {CAP}, v{24+j}")
        a("s_nop 1")
        a(f"v_cndmask_b32 v{16+j}, v3, v{16+j}, vcc")
        a(f"ds_write_b32 v{16+j}, v{28+j}")
    a("K1_BIN_SKIP:")
    a("s_mov_b64 exec, s[26:27]")
    if EPF==2: epf_bin()
    a("s_waitcnt lgkmcnt(0)")
    a("s_barrier")
    a("v_lshrrev_b32 v2, 2, v0")
    a("v_lshlrev_b32 v3, 2, v2")
    for i in range(4):
        a(f"ds_read_b128 v[{8+4*i}:{11+4*i}], v1 offset:{i*8192}")
        a(f"ds_read_b32 v{24+i}, v3 offset:{32768+i*512}")
    a("s_movk_i32 s25, 5120")
    a("v_mul_u32_u24 v2, s25, v2")
    a("v_and_b32 v3, 3, v0")
    a("v_lshl_add_u32 v2, v3, 4, v2")
    a("s_lshl_b32 s3, s2, 6")
    a(f"s_add_u32 s3, s3, {WS_LIST}")
    a("v_mov_b32 v4, -2")
    for i in range(4):
        a(f"s_waitcnt lgkmcnt({6-2*i})")
        a(f"v_cmp_lt_u32 vcc, {CAP}, v{24+i}")
        a("s_nop 1")
        for k in range(4): a(f"v_cndmask_b32 v{8+4*i+k}, v{8+4*i+k}, v4, vcc")
        a(f"buffer_store_dwordx4 v[{8+4*i}:{11+4*i}], v2, s[20:23], s3 offen{list_mod}")
        if i<3: a(f"s_add_u32 s3, s3, {128*5120}")
    if EPF in (1,2): a("s_waitcnt vmcnt(4)")
    a("s_endpgm")
    a("K1_NOBIN:")
    a(f"s_cmp_ge_u32 s2, {NCH+NG}")
    a("s_cbranch_scc1 K1_PREP")
    a("s_load_dwordx2 s[8:9], s[0:1], 0")
    a("s_load_dwordx2 s[10:11], s[0:1], 32")
    if EPF>=3: a("s_load_dwordx2 s[40:41], s[0:1], 8")
    a("v_and_b32 v1, 63, v0")
    a("v_lshrrev_b32 v2, 6, v0")
    a(f"s_sub_u32 s3, s2, {NCH}")
    a("v_readfirstlane_b32 s6, v2")
    a("s_lshl_b32 s3, s3, 6")
    a("v_lshrrev_b32 v3, 4, v1")
    a("s_lshl_b32 s7, s6, 3")
    a("v_add_u32 v4, s7, v3")
    a("v_add_u32 v5, 4, v4")
    a("v_and_b32 v6, 15, v1")
    for r in (4,5):
        a(f"v_and_b32 v7, 15, v{r}",f"v_xor_b32 v7, v7, v6",f"v_add_u32 v{r}, s3, v{r}",f"v_lshlrev_b32 v{r}, 8, v{r}",f"v_lshl_add_u32 v{r}, v7, 4, v{r}")
    a("v_lshrrev_b32 v6, 5, v1")
    a("v_and_b32 v7, 31, v1")
    a("v_lshlrev_b32 v8, 2, v6","v_xor_b32 v7, v7, v8","v_lshlrev_b32 v7, 4, v7")
    a("v_lshl_add_u32 v8, v6, 9, v7")
    a("v_xor_b32 v9, 128, v8")
    a("s_waitcnt lgkmcnt(0)")
    if prof: a("s_memrealtime s[28:29]")
    srd(a,12,8,2560000)
    srd(a,16,10,128*512)
    a("s_add_u32 s20, s4, %d"%WS_P,"s_addc_u32 s21, s5, 0","s_mov_b32 s22, 5120000","s_mov_b32 s23, 0x00020000")
    a("s_lshl_b32 s7, s6, 11","s_add_u32 m0, s7, 65536","s_lshl_b32 s24, s6, 13")
    a("buffer_load_dwordx4 v4, s[12:15], 0 offen lds")
    a("s_add_u32 m0, s7, 66560","s_nop 0")
    a("buffer_load_dwordx4 v5, s[12:15], 0 offen lds")
    for j in range(8):
        a(f"s_add_u32 s25, s24, {j*1024}","s_mov_b32 m0, s25","s_nop 0")
        a(f"buffer_load_dwordx4 v{8+(j&1)}, s[16:19], s25 offen lds")
    a("v_bfe_u32 v10, v1, 2, 2")
    a("v_lshl_add_u32 v11, v6, 3, v10")
    a("v_lshlrev_b32 v11, 9, v11")
    a("v_and_b32 v12, 1, v1","v_lshlrev_b32 v12, 1, v12","v_bfe_u32 v13, v1, 4, 1","v_or_b32 v12, v12, v13")
    a("s_lshl_b32 s7, s6, 2","v_or_b32 v12, s7, v12")
    a("v_lshlrev_b32 v10, 2, v10","v_xor_b32 v12, v12, v10")
    a("v_lshl_add_u32 v11, v12, 4, v11")
    a("v_bfe_u32 v13, v1, 1, 1","v_lshl_add_u32 v11, v13, 3, v11")
    a("v_and_b32 v12, 31, v1","v_and_b32 v13, 15, v1","v_xor_b32 v13, v13, v6","v_lshlrev_b32 v13, 4, v13")
    a("v_lshl_add_u32 v13, v12, 8, v13","v_add_u32 v16, 0x10000, v13")
    for s in range(1,8): a(f"v_xor_b32 v{16+s}, {s<<5}, v16")
    a("v_add_u32 v14, s3, v12","v_lshlrev_b32 v14, 9, v14","v_lshl_add_u32 v14, v6, 5, v14","s_lshl_b32 s7, s6, 6","v_add_u32 v14, s7, v14")
    a(f"s_mov_b32 s7, 0x{NEG_LOG2E:x}")
    WF=24; XFa=56; D0=120
    def epf_g():
        a("s_mov_b32 s42, 5120000","s_mov_b32 s43, 0x00020000","s_lshl_b32 s44, s3, 9")
        a("v_lshlrev_b32 v15, 4, v0","v_add_u32 v15, s44, v15")
        for k in range(4):
            a(f"buffer_load_dwordx4 v[{8}:{11}], v15, s[40:43], 0 offen" if False else f"buffer_load_dword v{0 if False else 152+k}, v15, s[40:43], 0 offen")
            if k<3: a("v_add_u32 v15, 0x2000, v15")
    if EPF==4: a("s_waitcnt vmcnt(4)"); epf_g()
    a("s_waitcnt vmcnt(0)" if EPF!=4 else "s_waitcnt vmcnt(4)","s_barrier")
    if EPF==3: epf_g()
    if prof: a("s_memrealtime s[30:31]")
    for s in range(8):
        for q in range(2): a(f"ds_read_b64_tr_b16 v[{WF+4*s+2*q}:{WF+4*s+2*q+1}], v11 offset:{s*8192+q*2048}")
        a(f"ds_read_b128 v[{XFa+4*s}:{XFa+4*s+3}], v{16+s}")
    for s in range(4):
        a(f"ds_read_b128 v[{XFa+32+4*s}:{XFa+32+4*s+3}], v{16+s} offset:8192")
    for s in range(8):
        n=3*(7-s)+4
        a(f"s_waitcnt lgkmcnt({min(n,15)})")
        if s==4:
            pass
        a(f"v_mfma_f32_32x32x16_bf16 v[{D0}:{D0+15}], v[{WF+4*s}:{WF+4*s+3}], v[{XFa+4*s}:{XFa+4*s+3}], "+("0" if s==0 else f"v[{D0}:{D0+15}]"))
    for s in range(4,8):
        a(f"ds_read_b128 v[{XFa+32+4*s}:{XFa+32+4*s+3}], v{16+s} offset:8192")
    for s in range(8):
        if s==0: a("s_waitcnt lgkmcnt(4)")
        if s>=4: a(f"s_waitcnt lgkmcnt({7-s})")
        a(f"v_mfma_f32_32x32x16_bf16 v[{D0+16}:{D0+31}], v[{WF+4*s}:{WF+4*s+3}], v[{XFa+32+4*s}:{XFa+32+4*s+3}], "+("0" if s==0 else f"v[{D0+16}:{D0+31}]"))
    for tt in range(2):
        if tt==1: a("s_nop 7","s_nop 3")
        for i in range(16): a(f"v_mul_f32 v{D0+16*tt+i}, s7, v{D0+16*tt+i}")
        for j in range(8): a(f"v_cvt_pk_bf16_f32 v{XFa+8*tt+j}, v{D0+16*tt+2*j}, v{D0+16*tt+2*j+1}")
        if tt==1: a("v_add_u32 v14, 0x4000, v14")
        if store_mod!="skip":
            a(f"buffer_store_dwordx4 v[{XFa+8*tt}:{XFa+8*tt+3}], v14, s[20:23], 0 offen{store_mod}")
            a(f"buffer_store_dwordx4 v[{XFa+8*tt+4}:{XFa+8*tt+7}], v14, s[20:23], 0 offen offset:16{store_mod}")
    a("s_endpgm")
    a("K1_PREP:")
    a(f"s_sub_u32 s3, s2, {NCH+NG}")
    a("s_load_dwordx4 s[8:11], s[0:1], 32")
    a("s_load_dwordx4 s[12:15], s[0:1], 48")
    a("v_and_b32 v1, 63, v0")
    a("v_lshrrev_b32 v2, 5, v1")
    a("v_and_b32 v3, 31, v0")
    a("s_waitcnt lgkmcnt(0)")
    srd(a,20,4,WS_END)
    a("s_cmp_ge_u32 s3, 9")
    a("s_cbranch_scc1 K1_PREP2")
    a("s_add_u32 s3, s3, 8")
    srd(a,16,8,272*256*2)
    a("v_lshrrev_b32 v4, 6, v0")
    a("v_lshl_add_u32 v4, v4, 5, v3")
    a("v_lshlrev_b32 v4, 1, v4")
    a("v_lshl_add_u32 v4, v2, 12, v4")
    a("s_lshl_b32 s6, s3, 13")
    for j in range(8): a(f"buffer_load_ushort v{8+j}, v4, s[16:19], s6 offen offset:{j*512}")
    a(f"s_mov_b32 s7, 0x{NEG_LOG2E:x}")
    a("v_lshlrev_b32 v5, 4, v0")
    a("s_waitcnt vmcnt(0)")
    for j in range(8): a(f"v_lshlrev_b32 v{8+j}, 16, v{8+j}")
    for j in range(8): a(f"v_mul_f32 v{8+j}, s7, v{8+j}")
    for j in range(4): a(f"v_cvt_pk_bf16_f32 v{16+j}, v{8+2*j}, v{9+2*j}")
    a(f"buffer_store_dwordx4 v[16:19], v5, s[20:23], s6 offen")
    a("s_endpgm")
    a("K1_PREP2:")
    a("s_cmp_ge_u32 s3, 17")
    a("s_cbranch_scc1 K1_PREP3")
    srd(a,16,12,256*128*2)
    a("s_sub_u32 s3, s3, 9")
    a("v_lshrrev_b32 v4, 8, v0")
    a("s_lshl_b32 s6, s3, 1")
    a("v_add_u32 v4, s6, v4")
    a("v_bfe_u32 v5, v0, 6, 2")
    a("v_bfe_u32 v6, v3, 2, 1","v_lshlrev_b32 v6, 4, v6")
    a("v_lshrrev_b32 v7, 3, v3","v_lshl_add_u32 v6, v7, 2, v6")
    a("v_and_b32 v7, 3, v3","v_add_u32 v6, v6, v7")
    a("v_lshl_add_u32 v6, v5, 5, v6")
    a("v_lshlrev_b32 v6, 1, v6")
    a("v_lshl_add_u32 v6, v4, 12, v6")
    a("v_lshl_add_u32 v6, v2, 10, v6")
    for q in range(2):
        for r in range(4): a(f"buffer_load_ushort v{8+4*q+r}, v6, s[16:19], 0 offen offset:{(8*q+r)*256}")
    a("v_lshl_add_u32 v5, v5, 4, v4","v_lshlrev_b32 v5, 10, v5","v_lshl_add_u32 v5, v1, 4, v5")
    a(f"s_mov_b32 s6, {WS_W2}")
    a("s_waitcnt vmcnt(0)")
    for j in range(4): a(f"v_lshl_or_b32 v{16+j}, v{9+2*j}, 16, v{8+2*j}")
    a(f"buffer_store_dwordx4 v[16:19], v5, s[20:23], s6 offen")
    a("s_endpgm")
    a("K1_PREP3:")
    srd(a,16,10,512)
    srd(a,24,14,256)
    a("v_lshlrev_b32 v4, 1, v0","v_lshlrev_b32 v5, 2, v0")
    a("buffer_load_ushort v8, v4, s[16:19], 0 offen")
    a("buffer_load_ushort v9, v4, s[24:27], 0 offen")
    a("v_lshrrev_b32 v6, 4, v0","v_and_b32 v7, 15, v0","v_lshlrev_b32 v7, 1, v7")
    a("v_mov_b32 v10, 0","v_mov_b32 v11, 0x3f80","v_mov_b32 v12, 0x3f800000")
    a("v_cmp_eq_u32 vcc, v6, v7","s_nop 1","v_cndmask_b32 v10, v10, v11, vcc")
    a("v_add_u32 v7, 1, v7")
    a("v_cmp_eq_u32 vcc, v6, v7","s_nop 1","v_cndmask_b32 v10, v10, v12, vcc")
    a(f"s_mov_b32 s6, {WS_ID}")
    a("buffer_store_dword v10, v5, s[20:23], s6 offen")
    a(f"s_mov_b32 s7, 0x{NEG_LOG2E:x}")
    a("s_waitcnt vmcnt(1)")
    a("v_lshlrev_b32 v8, 16, v8","v_lshlrev_b32 v9, 16, v9","v_mul_f32 v8, s7, v8")
    a("v_cmp_gt_u32 vcc, 256, v0","s_and_saveexec_b64 s[28:29], vcc","s_cbranch_execz K1_EXIT")
    a(f"s_mov_b32 s6, {WS_B1}")
    a("buffer_store_dword v8, v5, s[20:23], s6 offen")
    a("v_cmp_gt_u32 vcc, 128, v0","s_and_saveexec_b64 s[28:29], vcc","s_cbranch_execz K1_EXIT")
    a(f"s_mov_b32 s6, {WS_B2}")
    a("buffer_store_dword v9, v5, s[20:23], s6 offen")
    a("K1_EXIT:")
    a("s_endpgm")
    if prof:
        n=len(a.l)
        for i in range(n-1):
            if a.l[i]=="s_endpgm": a.l[i]="s_branch K1_PEND"
        a("K1_PEND:")
        a("s_waitcnt vmcnt(0)")
        a("s_memrealtime s[38:39]")
        a("s_mov_b64 exec, 1")
        a(f"s_add_u32 s32, s4, {WS_TOT4+512*4*64}","s_addc_u32 s33, s5, 0","s_mov_b32 s34, 65536","s_mov_b32 s35, 0x00020000")
        a("v_lshrrev_b32 v1, 6, v0","s_lshl_b32 s3, s2, 3","v_add_u32 v1, s3, v1","v_lshlrev_b32 v1, 4, v1")
        a("s_waitcnt lgkmcnt(0)")
        a("v_mov_b32 v2, s36","v_mov_b32 v3, s38","v_mov_b32 v4, s28","v_mov_b32 v5, s30")
        a("buffer_store_dwordx4 v[2:5], v1, s[32:35], 0 offen")
        a("s_endpgm")
    return a
```

```python
import sys
from gen import *
from g4k1 import *
from g5k2 import *
import g5k2, g4k1

PROF=int(sys.argv[2]) if len(sys.argv)>2 else 0
OPT=eval(sys.argv[3]) if len(sys.argv)>3 else {}
CFG.update(OPT.get('cfg',{}))
g4k1.K1OPT.update(OPT.get('k1',{}))
PRIO=OPT.get('prio',[])
WS_PROF=WS_TOT4
WS_TOT=WS_TOT4+512*4*64

def stamp(a,i):
    if not PROF: return
    if PROF==1: a(f"s_memtime s[{64+2*i}:{65+2*i}]")
    else: a(f"s_memrealtime s[{64+2*i}:{65+2*i}]")
    if PROF==2 and i==4: a("s_memtime s[92:93]")
    if PROF==2 and i==5: a("s_memtime s[94:95]")

G1P=[T[2]+2*k for k in range(5)]
G2P=[XF+2*k for k in range(5)]
PFK=OPT.get('pfk',0); PFS=OPT.get('pfs',128)
def dma_group(a,g,prs,ax,wait=True):
    for b in range(4):
        a(f"s_add_u32 m0, s{sPM0}, {g*PSLOT+b*1024}")
        if b==0 and wait is not None: a(f"s_waitcnt lgkmcnt({wait})")
        else: a("s_nop 0")
        a(f"buffer_load_dwordx4 v[{prs[b]}:{prs[b]+1}], s[{sP}:{sP+3}], 0 idxen offen lds")
    a(f"buffer_load_dwordx4 {vr(EFR[g],4)}, v[{ax}:{ax+1}], s[{sAUX}:{sAUX+3}], 0 idxen offen")
def idx_group(a,g,prs,ax):
    a(f"ds_read_b32 v{ax}, v{TMP+3} offset:{g*128}")
    for b in range(4): a(f"ds_read_b32 v{prs[b]}, v{TMP+2} offset:{g*128+b*32}")
def list_fill(a,tid16,vnull4,vz4):
    for k in range(4): a(f"v_mov_b32 v{vz4+k}, {ZROW}")
    for i in range(2): a(f"ds_write_b128 v{tid16}, {vr(vnull4,4)} offset:{LS+i*4096}")
    a(f"ds_write_b128 v{tid16}, {vr(vz4,4)} offset:{LD}")
    a(f"v_cmp_gt_u32 vcc, {192*16}, v{tid16}")
    a("s_and_saveexec_b64 s[42:43], vcc")
    a(f"ds_write_b128 v{tid16}, {vr(vnull4,4)} offset:{LS+8192}")
    a("s_mov_b64 exec, s[42:43]")
    a(f"v_cmp_gt_u32 vcc, {96*16}, v{tid16}")
    a("s_and_saveexec_b64 s[42:43], vcc")
    a(f"ds_write_b128 v{tid16}, {vr(vz4,4)} offset:{LD+4096}")
    a("s_mov_b64 exec, s[42:43]")

def compact(a,nc,maskgen,fieldgen,tP,tA,tB,tC,tOne,tz):
    for j in range(nc): maskgen(j)
    a("s_nop 0")
    a(f"s_bcnt1_i32_b64 s{sT}, s[{sMASK}:{sMASK+1}]")
    for j in range(1,nc):
        a(f"s_bcnt1_i32_b64 s{sT+1}, s[{sMASK+2*j}:{sMASK+2*j+1}]",f"s_add_u32 s{sT}, s{sT}, s{sT+1}")
    a(f"v_mov_b32 v{tA}, s{sT}",f"v_mov_b32 v{tz}, {CNT}",f"v_mov_b32 v{tOne}, 1")
    a("s_mov_b64 exec, 1")
    a(f"ds_add_rtn_u32 v{tB}, v{tz}, v{tA}")
    a("s_waitcnt lgkmcnt(0)")
    a("s_mov_b64 exec, -1")
    a(f"v_readfirstlane_b32 s{sT}, v{tB}")
    for j in range(nc):
        a(f"v_mbcnt_lo_u32_b32 v{tP}, s{sMASK+2*j}, 0")
        a(f"v_mbcnt_hi_u32_b32 v{tP}, s{sMASK+2*j+1}, v{tP}")
        fieldgen(j)
        a(f"v_add_u32 v{tP}, s{sT}, v{tP}")
        a(f"v_lshlrev_b32 v{tP}, 2, v{tP}")
        a(f"v_lshlrev_b32 v{tz}, 2, v{tB}")
        a(f"v_mul_u32_u24 v{tB}, {TRS}, v{tB}",f"v_add_u32 v{tB}, {TBL}, v{tB}")
        a(f"s_mov_b64 exec, s[{sMASK+2*j}:{sMASK+2*j+1}]")
        a(f"ds_write_b32 v{tP}, v{tA} offset:{LS}")
        a(f"ds_write_b32 v{tP}, v{tC} offset:{LE}")
        a(f"ds_write_b32 v{tP}, v{tB} offset:{LD}")
        a(f"ds_add_u32 v{tz}, v{tOne} offset:{DEG}")
        a("s_mov_b64 exec, -1")
        if j<nc-1:
            a(f"s_bcnt1_i32_b64 s{sT+1}, s[{sMASK+2*j}:{sMASK+2*j+1}]",f"s_add_u32 s{sT}, s{sT}, s{sT+1}")

W2Q=[XF+4*k for k in range(9)]+[PA,PA+4,EFR[0],OA,OA+4,W1E,W1E+4]
FRQ=[S+4*k for k in range(8)]+[T[1]+4*k for k in range(4)]+[T[2]+4*k for k in range(4)]

def gen_k2():
    a=A()
    a("k2_main_kernel:")
    a("s_cmp_ge_u32 s2, 512","s_cbranch_scc1 K2_EXIT")
    if OPT.get('pstart') is not None: a(f"s_setprio {OPT['pstart']}")
    a("s_load_dwordx2 s[28:29], s[0:1], 80")
    a("s_load_dwordx4 s[4:7], s[0:1], 0")
    a("s_load_dwordx2 s[24:25], s[0:1], 64")
    stamp(a,0)
    t0=TMP+4
    a(f"v_lshrrev_b32 v{t0}, 6, v0")
    a(f"v_and_b32 v{t0+1}, 63, v0")
    a(f"v_readfirstlane_b32 s{sWAVE}, v{t0}")
    L=t0+1
    a(f"s_mov_b32 s{sB}, s2")
    if OPT.get('bal'):
        a(f"s_lshr_b32 s42, s2, 8",f"s_xor_b32 s{sB}, s2, s42")
    n4=XF; tid16=XF+4; z=XF+5
    a(f"v_lshlrev_b32 v{tid16}, 4, v0",f"v_lshlrev_b32 v{z}, 2, v0")
    Ls=XF+13
    a(f"v_mov_b32 v{Ls}, v{L}")
    ent=t0
    a(f"s_mul_i32 s42, s{sB}, 5120",f"s_add_u32 s42, s42, {WS_LIST}","s_add_u32 s43, s42, 4096")
    a("s_waitcnt lgkmcnt(0)")
    srd(a,sWS,28,WS_TOT)
    a(f"buffer_load_dwordx4 {vr(ent,4)}, v{tid16}, s[{sWS}:{sWS+3}], s42 offen")
    a(f"buffer_load_dword v{ent+4}, v{z}, s[{sWS}:{sWS+3}], s43 offen")
    L=Ls
    a(f"s_mul_i32 s{sSTART}, s{sB}, 625",f"s_add_u32 s{sCOUNT}, s{sSTART}, {625+31}",f"s_add_u32 s{sSTART}, s{sSTART}, 31")
    a(f"s_lshr_b32 s{sSTART}, s{sSTART}, 5",f"s_lshr_b32 s{sCOUNT}, s{sCOUNT}, 5",f"s_sub_u32 s{sCOUNT}, s{sCOUNT}, s{sSTART}")
    e=XF+8; h=XF+9; u=XF+10; w=XF+11; x=XF+12
    a(f"v_lshrrev_b32 v{u}, 4, v{L}")
    a(f"v_and_b32 v{x}, 15, v{L}",f"v_xor_b32 v{x}, v{x}, v{u}",f"v_lshlrev_b32 v{PI[0]+1}, 4, v{x}",f"v_mov_b32 v{PI[1]+1}, v{PI[0]+1}")
    a(f"s_lshl_b32 s42, s{sWAVE}, 3")
    a(f"v_add_u32 v{x}, s42, v{u}")
    a(f"v_and_b32 v{w}, 8, v{x}",f"v_lshrrev_b32 v{w}, 1, v{w}",f"v_and_b32 v{x}, 0x13, v{x}",f"v_or_b32 v{x}, v{x}, v{w}")
    a(f"v_add_u32 v{w}, 8, v{x}")
    a(f"v_mov_b32 v{e}, 0x{NULLI:x}")
    for (reg,dstp) in ((x,PI[0]),(w,PI[1])):
        a(f"v_cmp_gt_u32 vcc, s{sCOUNT}, v{reg}")
        a(f"v_add_u32 v{reg}, s{sSTART}, v{reg}")
        a("s_nop 0")
        a(f"v_cndmask_b32 v{dstp}, v{e}, v{reg}, vcc")
    srd(a,sX,4,10000,256)
    a(f"s_mul_i32 s42, s{sWAVE}, {2*XBLK}",f"s_add_u32 m0, s42, {XO}")
    a(f"buffer_load_dwordx4 v[{PI[0]}:{PI[0]+1}], s[{sX}:{sX+3}], 0 idxen offen lds")
    a(f"s_add_u32 m0, s42, {XO+XBLK}","s_nop 0")
    a(f"buffer_load_dwordx4 v[{PI[1]}:{PI[1]+1}], s[{sX}:{sX+3}], 0 idxen offen lds")
    EP2=1 if OPT.get('epf2',0) else 0
    EPM=OPT.get('epf2',0)
    def epf2():
        srd(a,44,6,5120000)
        a(f"s_mul_i32 s42, s{sB}, 10000",f"v_mul_u32_u24 v{XF+27}, 40, v0",f"v_add_u32 v{XF+27}, s42, v{XF+27}")
        a(f"buffer_load_dword v240, v{XF+27}, s[44:47], 0 offen")
    if EPM==1: epf2()
    def wblock():
        wv=XF+14
        a(f"s_lshl_b32 s42, s{sWAVE}, 11",f"v_lshl_add_u32 v{wv}, v{L}, 4, s42")
        def wd_loads(order):
            for s in order:
                a(f"s_mov_b32 s42, {WS_W1+(8+s)*8192}")
                for c in range(2): a(f"buffer_load_dwordx4 {vr(WD+(c*8+s)*4,4)}, v{wv}, s[{sWS}:{sWS+3}], s42 offen offset:{c*1024}")
        if OPT.get('rev') is not None:
            a(f"s_bitcmp1_b32 s{sB}, {OPT['rev']}","s_cbranch_scc1 K2_REV")
            wd_loads(range(8))
            a("s_branch K2_REV2","K2_REV:")
            wd_loads(range(7,-1,-1))
            a("K2_REV2:")
        else: wd_loads(range(8))
        bq=XF+15
        a(f"v_and_b32 v{bq}, 31, v{L}",f"s_lshl_b32 s42, s{sWAVE}, 8",f"v_lshl_add_u32 v{bq}, v{bq}, 2, s42",f"s_mov_b32 s42, {WS_B1}")
        a(f"buffer_load_dword v{ent+5}, v{bq}, s[{sWS}:{sWS+3}], s42 offen")
        a(f"buffer_load_dword v{ent+6}, v{bq}, s[{sWS}:{sWS+3}], s42 offen offset:128")
        a(f"s_mov_b32 s42, {WS_W1+16*8192}")
        for c in range(2): a(f"buffer_load_dwordx4 {vr(W1E+4*c,4)}, v{wv}, s[{sWS}:{sWS+3}], s42 offen offset:{c*1024}")
        if PFK:
            pf=XF+6+1
            pf=XF+27
            a(f"s_lshr_b32 s42, s{sB}, 3",f"s_lshl_b32 s43, s42, 2",f"s_add_u32 s42, s43, s{sWAVE}")
            a(f"s_mul_i32 s42, s42, {PFK*64*PFS}",f"s_add_u32 s42, s42, {WS_P}")
            a(f"v_mul_u32_u24 v{pf}, {PFS}, v{L}") if PFS<=64 else a(f"v_lshlrev_b32 v{pf}, 7, v{L}")
            for k in range(PFK):
                a(f"buffer_load_dword v{240+(k&3)}, v{pf}, s[{sWS}:{sWS+3}], s42 offen")
                if k<PFK-1: a(f"s_add_u32 s42, s42, {64*PFS}")
    WDP=OPT.get('wdpos',0)
    if WDP==0: wblock()
    for k in range(4): a(f"v_mov_b32 v{n4+k}, 0x{NULLI:x}")
    list_fill(a,tid16,n4,XF+28)
    a(f"v_mov_b32 v{z+1}, 0")
    a(f"ds_write_b32 v{z}, v{z+1}")
    a(f"s_cmp_lg_u32 s{sWAVE}, 0","s_cbranch_scc1 K2_NOTBL")
    for k in range(4): a(f"v_mov_b32 v{XF+28+k}, 0")
    a(f"ds_write_b128 v{tid16}, {vr(XF+28,4)} offset:{TBL}")
    a(f"v_cmp_gt_u32 vcc, {48*16}, v{tid16}","s_and_saveexec_b64 s[42:43], vcc")
    a(f"ds_write_b128 v{tid16}, {vr(XF+28,4)} offset:{TBL+1024}")
    a("s_mov_b64 exec, s[42:43]")
    a(f"v_cmp_gt_u32 vcc, 20, v{L}","s_and_saveexec_b64 s[42:43], vcc")
    a(f"v_mul_u32_u24 v{XF+28}, {TRS+2}, v{L}",f"v_mov_b32 v{XF+29}, 0x3f80")
    a(f"ds_write_b16 v{XF+28}, v{XF+29} offset:{TBL}")
    a("s_mov_b64 exec, s[42:43]")
    a("K2_NOTBL:")
    if WDP==3: wblock()
    a(f"v_and_b32 v{e}, 31, v{L}",f"v_lshrrev_b32 v{h}, 5, v{L}")
    a(f"v_lshrrev_b32 v{u}, 2, v{e}")
    xa=[22,23]
    a(f"s_movk_i32 s42, {XBLK}")
    a(f"v_mul_u32_u24 v{w}, s42, v{u}")
    a(f"v_and_b32 v{x}, 3, v{e}")
    a(f"v_lshl_add_u32 v{w}, v{x}, 8, v{w}")
    a(f"v_xor_b32 v{x}, v{x}, v{h}")
    a(f"v_lshl_add_u32 v{w}, v{x}, 4, v{w}")
    a(f"v_add_u32 v{xa[0]}, {XO}, v{w}",f"v_xor_b32 v{xa[1]}, 32, v{xa[0]}")
    a(f"v_lshlrev_b32 v{vH16}, 4, v{h}")
    a(f"v_bfe_u32 v{x}, v{L}, 4, 1",f"v_lshlrev_b32 v{x}, 5, v{x}",f"v_and_b32 v{w}, 3, v{L}",f"v_lshl_add_u32 v{vOBo}, v{w}, 3, v{x}")
    a(f"v_bfe_u32 v{w}, v{L}, 2, 2",f"v_lshl_add_u32 v{w}, v{h}, 2, v{w}",f"v_lshlrev_b32 v{w}, 2, v{w}",f"v_add_u32 v{TMP+1}, {LD}, v{w}")
    a(f"s_lshl_b32 s42, s{sWAVE}, 12",f"s_add_u32 s{sPM0}, s42, {PR}")
    a(f"v_bfe_u32 v{x}, v{e}, 1, 3",f"v_xor_b32 v{x}, v{x}, v{h}",f"v_lshlrev_b32 v{x}, 4, v{x}",f"v_lshl_add_u32 v{x}, v{e}, 7, v{x}")
    a(f"v_add_u32 v{vPA[0]}, s{sPM0}, v{x}")
    for k in range(1,4): a(f"v_xor_b32 v{vPA[k]}, {32*k}, v{vPA[0]}")
    a(f"v_and_b32 v{x}, 7, v{L}",f"v_lshrrev_b32 v{w}, 4, v{L}",f"v_xor_b32 v{x}, v{x}, v{w}",f"v_lshlrev_b32 v{x}, 4, v{x}")
    a(f"s_lshl_b32 s42, s{sWAVE}, 7",f"v_add_u32 v{TMP}, s42, v{x}")
    a(f"v_lshrrev_b32 v{x}, 3, v{L}",f"v_lshlrev_b32 v{x}, 2, v{x}",f"v_add_u32 v{TMP+2}, {LS}, v{x}")
    a(f"v_lshlrev_b32 v{x}, 3, v{h}",f"v_sub_u32 v{x}, v{e}, v{x}")
    a(f"v_and_b32 v{w}, 1, v{x}",f"v_lshlrev_b32 v{w}, 4, v{w}",f"v_mov_b32 v{u}, 0x3f80",f"v_lshlrev_b32 v{w}, v{w}, v{u}")
    a(f"v_ashrrev_i32 v{x}, 1, v{x}")
    for k in range(8):
        a(f"v_cmp_eq_u32 vcc, {k if k<4 else k+4}, v{x}","s_nop 1",f"v_cndmask_b32 v{ID+k}, 0, v{w}, vcc")
    a(f"v_cmp_eq_u32 vcc, 0, v{h}","s_nop 1",f"v_cndmask_b32 v{ONE}, 0, v{u}, vcc")
    for k in range(1,4): a(f"v_mov_b32 v{ONE+k}, 0")
    srd(a,sOUT,24,2560000)
    a(f"s_add_u32 s{sP}, s28, {WS_P}",f"s_addc_u32 s{sP+1}, s29, 0",f"s_or_b32 s{sP+1}, s{sP+1}, 0x{512<<16:x}",f"s_mov_b32 s{sP+2}, 10000",f"s_mov_b32 s{sP+3}, 0x00020000")
    srd(a,sAUX,6,160000,32)
    a(f"v_lshlrev_b32 v{AX+1}, 4, v{h}")
    a(f"v_lshlrev_b32 v{x}, 2, v{e}",f"v_add_u32 v{TMP+3}, {LE}, v{x}")
    cb=XF+16; cb4=XF+17
    a("s_movk_i32 s42, 2000")
    a(f"v_lshrrev_b32 v{cb}, 2, v0",f"v_lshrrev_b32 v{cb4}, 4, v0",f"v_add_u32 v{cb4}, 64, v{cb4}")
    a(f"v_lshlrev_b32 v{XF+18}, 2, v{cb}",f"v_lshlrev_b32 v{XF+19}, 2, v{cb4}")
    a(f"v_mul_u32_u24 v{cb}, s42, v{cb}",f"v_mul_u32_u24 v{cb4}, s42, v{cb4}")
    if WDP==1: wblock()
    a("s_waitcnt lgkmcnt(0)","s_barrier")
    if WDP==2: wblock()
    a(f"s_waitcnt vmcnt({22+PFK+(EPM==1)})")
    if EPM==2: epf2()
    stamp(a,1)
    for (er,fa,lab) in ((ent,XF+18,"A"),(ent+4,XF+19,"B")):
        a(f"v_cmp_eq_u32 vcc, -2, v{er}")
        a("s_and_saveexec_b64 s[42:43], vcc")
        a(f"v_mov_b32 v{XF+20}, 1")
        a(f"ds_write_b32 v{fa}, v{XF+20} offset:{FLG}")
        a("s_mov_b64 exec, s[42:43]")
    tP,tA,tB,tC,tOne,tz=XF+21,XF+22,XF+23,XF+24,XF+25,XF+26
    def mg(j): a(f"v_cmp_le_i32_e64 s[{sMASK+2*j}:{sMASK+2*j+1}], 0, v{ent+j}")
    def fg(j):
        a(f"v_and_b32 v{tA}, 0x3fff, v{ent+j}",f"v_bfe_u32 v{tB}, v{ent+j}, 14, 5",f"v_lshrrev_b32 v{tC}, 19, v{ent+j}",f"v_add_u32 v{tC}, v{tC}, v{cb if j<4 else cb4}")
    compact(a,5,mg,fg,tP,tA,tB,tC,tOne,tz)
    a(f"s_waitcnt vmcnt({20+PFK+EP2}) lgkmcnt(0)")
    a("s_barrier")
    stamp(a,2)
    def read_n_flags(flags):
        a(f"v_mov_b32 v{tz}, {CNT}",f"ds_read_b32 v{tA}, v{tz}")
        if flags:
            a(f"v_and_b32 v{tB}, 63, v0",f"v_lshlrev_b32 v{tB}, 2, v{tB}")
            a(f"ds_read_b32 v{tC}, v{tB} offset:{FLG}",f"ds_read_b32 v{tP}, v{tB} offset:{FLG+256}")
    def use_n_flags(flags):
        a(f"v_readfirstlane_b32 s{sN}, v{tA}")
        if flags:
            a(f"v_cmp_ne_u32_e64 s[{sF0}:{sF0+1}], 0, v{tC}")
            a(f"v_cmp_ne_u32_e64 s[42:43], 0, v{tP}")
            a("s_nop 0")
            a(f"s_and_b32 s{sF1}, s42, 0xffff")
            a(f"s_mov_b32 s{sHALF}, 0",f"s_mov_b32 s{sW2}, 0")
        a(f"s_add_u32 s{sNT}, s{sN}, 31",f"s_lshr_b32 s{sNT}, s{sNT}, 5")
    read_n_flags(True)
    def first_mid():
        pass
    a(f"v_mov_b32 v{vLX}, v{TMP+2}",f"v_mov_b32 v{vLA}, v{TMP+3}",f"v_mov_b32 v{vLB}, v{TMP+1}")
    def offs():
        for b in range(4):
            if b&1: a(f"v_xor_b32 v{PI[b]+1}, 64, v{TMP}",f"v_xor_b32 v{G1P[b]+1}, 64, v{TMP}")
            else: a(f"v_mov_b32 v{PI[b]+1}, v{TMP}",f"v_mov_b32 v{G1P[b]+1}, v{TMP}")
        a(f"v_mov_b32 v{G1P[4]+1}, v{AX+1}")
    offs()
    idx_group(a,0,PI,AX); idx_group(a,1,G1P[:4],G1P[4])
    dma_group(a,0,PI,AX,wait=5)
    use_n_flags(True)
    for s in range(8): a(f"ds_read_b128 {vr(XF+4*s,4)}, v{xa[s&1]} offset:{(s>>1)*64}")
    if OPT.get('st4')=='pre': stamp(a,4)
    a(f"s_waitcnt vmcnt({7+PFK+(EPM==2)})")
    if OPT.get('st4')=='w1d': stamp(a,4)
    for c in range(2):
        for i in range(16): a(f"v_mov_b32 v{T[c]+i}, v{ent+5+c}")
    a("s_waitcnt lgkmcnt(0)","s_barrier")
    if OPT.get('st4')=='bar3': stamp(a,4)
    for s in range(8):
        for c in range(2): a(mfma(T[c],XF+4*s,WD+(c*8+s)*4,T[c]))
        if s==OPT.get('g1s',3): dma_group(a,1,G1P[:4],G1P[4],wait=None)
    a("s_nop 7","s_nop 3")
    for c in range(2):
        for j in range(8): a(f"v_cvt_pk_bf16_f32 v{QF+8*c+j}, v{T[c]+2*j}, v{T[c]+2*j+1}")
    for i in range(32): a(f"v_mov_b32 v{S+i}, 0")
    stamp(a,3)
    a("K2_PIPE:")
    a(f"s_cmp_eq_u32 s{sNT}, 0","s_cbranch_scc1 K2_AFTER")
    for i in range(8): a(f"v_mov_b32 v{H+i}, 0")
    for i in range(8): a(f"v_mov_b32 v{OB+i}, 0")
    a("s_waitcnt vmcnt(5)")
    if not OPT.get('st4'): stamp(a,4)
    errs=0
    f=Fifo()
    pre=[]
    for b in range(4):
        if b&1: pre.append(f"v_xor_b32 v{G2P[b]+1}, 64, v{TMP}")
        else: pre.append(f"v_mov_b32 v{G2P[b]+1}, v{TMP}")
    pre.append(f"v_mov_b32 v{G2P[4]+1}, v{AX+1}")
    pre+=[rd_oal(0),rd_pa(0,0,0),rd_pa(1,0,0),add_oa(),rd_oa(0),rd_oa(1)]
    pre.append(("ds",f"ds_read_b32 v{G2P[4]}, v{TMP+3} offset:{2*128}",[G2P[4]]))
    for b in range(4): pre.append(("ds",f"ds_read_b32 v{G2P[b]}, v{TMP+2} offset:{2*128+b*32}",[G2P[b]]))
    mc=mchain(0,0,0)
    g2=[]
    for b in range(4):
        g2.append([f"s_add_u32 m0, s{sPM0}, {2*PSLOT+b*1024}","s_nop 0",f"buffer_load_dwordx4 v[{G2P[b]}:{G2P[b]+1}], s[{sP}:{sP+3}], 0 idxen offen lds"])
    g2.append([f"buffer_load_dwordx4 {vr(EFR[2],4)}, v[{G2P[4]}:{G2P[4]+1}], s[{sAUX}:{sAUX+3}], 0 idxen offen"])
    for k in range(5):
        pre.append(mc[k])
        if k<2: pre.append(rd_pa(k,1,0))
        pre+=g2[k]
    pre+=rd_idx(3)+[rd_oal(1)]
    pre=waits(pre,f)
    sm1=slot(2,1,f,"M1",X=True,R=False,M=True,Gp=False,rel=-1)
    pre=pre+["s_nop 7","s_nop 4"]
    for x_ in pre+sm1: a(x_)
    errs+=check(pre+sm1,"pre")
    a("s_waitcnt lgkmcnt(0)")
    a(f"s_mov_b32 s{sREM}, s{sNT}")
    if PRIO: a(f"s_setprio {OPT.get('prio0',3)}")
    f=Fifo();
    def iteration(f,emit):
        body=[]
        for p in range(3):
            hd=[f"s_cmp_eq_u32 s{sREM}, 1",f"s_cbranch_scc1 K2_TAIL{p}"]
            for (r,pr) in PRIO:
                hd+=[f"s_cmp_eq_u32 s{sREM}, {r}",f"s_cbranch_scc1 K2_PR{p}_{pr}",f"K2_PRB{p}_{pr}:"]
            sl=slot(p,0,f,f"L{p}")+slot(p,1,f,f"L{p}")
            body+=hd+sl+[f"s_sub_u32 s{sREM}, s{sREM}, 1"]
        return body
    iteration(f,False); q1=[set(x) for x in f.q]
    body=iteration(f,True); q2=[set(x) for x in f.q]
    assert q1==q2,(q1,q2)
    a("K2_LOOP:")
    for x_ in body: a(x_)
    a(f"v_add_u32 v{vLX}, 384, v{vLX}",f"v_add_u32 v{vLA}, 384, v{vLA}",f"v_add_u32 v{vLB}, 384, v{vLB}")
    a("s_branch K2_LOOP")
    errs+=check(sm1+body+body[:250],"loop")
    def w2load():
        a(f"v_and_b32 v{TMP+4}, 63, v0",f"s_lshl_b32 s42, s{sWAVE}, 14",f"v_lshl_add_u32 v{TMP+4}, v{TMP+4}, 4, s42")
        for f_ in range(16):
            if f_%4==0: a(f"s_mov_b32 s42, {WS_W2+(f_//4)*4096}")
            a(f"buffer_load_dwordx4 {vr(W2Q[f_],4)}, v{TMP+4}, s[{sWS}:{sWS+3}], s42 offen offset:{(f_%4)*1024}")
        a(f"v_and_b32 v{TMP+6}, 63, v0",f"v_lshrrev_b32 v{TMP+6}, 5, v{TMP+6}",f"s_lshl_b32 s42, s{sWAVE}, 7",f"v_lshl_add_u32 v{TMP+6}, v{TMP+6}, 6, s42",f"s_mov_b32 s42, {WS_B2}")
        for k in range(4): a(f"buffer_load_dwordx4 {vr(QF+4*k,4)}, v{TMP+6}, s[{sWS}:{sWS+3}], s42 offen offset:{16*k}")
        a(f"s_mov_b32 s{sW2}, 1")
    for p in range(3):
        a(f"K2_TAIL{p}:")
        if PRIO: a("s_setprio 0")
        a("s_waitcnt lgkmcnt(0)")
        a(f"s_or_b32 s42, s{sF0}, s{sF0+1}",f"s_or_b32 s42, s42, s{sF1}","s_cmp_lg_u32 s42, 0",f"s_cbranch_scc1 K2_NOW2_{p}")
        w2load()
        a(f"K2_NOW2_{p}:")
        f=Fifo()
        ta=slot(p,0,f,"",M=False); tb=slot(p,1,f,"",X=False,M=False)
        for x_ in ta+tb: a(x_)
        a("s_nop 1"); a(G(1,1))
        errs+=check(body[-120:]+ta+tb+["s_nop 1",G(1,1)],"tail")
        if p<2: a("s_branch K2_AFTER")
    a("K2_AFTER:")
    stamp(a,5)
    NB1=OPT.get('nb1',0)
    EXo=PR if NB1 else EX
    a("s_waitcnt lgkmcnt(0)")
    if not NB1: a("s_barrier")
    a(f"s_or_b32 s42, s{sF0}, s{sF0+1}",f"s_or_b32 s42, s42, s{sF1}","s_cmp_lg_u32 s42, 0","s_cbranch_scc1 K2_SLOW")
    a(f"s_cmp_lg_u32 s{sW2}, 0","s_cbranch_scc1 K2_EPI")
    w2load()
    a("K2_EPI:")
    lane=TMP+5; Uo=U[0]; B2=QF
    a(f"v_and_b32 v{lane}, 63, v0")
    a(f"v_and_b32 v{TMP+7}, 31, v{lane}",f"v_lshlrev_b32 v{TMP+8}, 2, v{TMP+7}",f"ds_read_b32 v{TMP+9}, v{TMP+8} offset:{DEG}")
    a(f"s_mov_b32 s42, 0x{NEG_LN2:x}")
    a("s_nop 7")
    for i in range(32): a(f"v_mul_f32 v{S+i}, s42, v{S+i}")
    for j in range(16): a(f"v_cvt_pk_bf16_f32 v{Uo+j}, v{S+2*j}, v{S+2*j+1}")
    a(f"s_lshl_b32 s42, s{sWAVE}, 12",f"v_lshl_add_u32 v{TMP+8}, v{lane}, 4, s42")
    if NB1: a("s_waitcnt vmcnt(20)")
    for k in range(4): a(f"ds_write_b128 v{TMP+8}, {vr(Uo+4*k,4)} offset:{EXo+k*1024}")
    a("s_waitcnt lgkmcnt(0)","s_barrier")
    a(f"v_lshlrev_b32 v{TMP+8}, 4, v{lane}")
    for f_ in range(16): a(f"ds_read_b128 {vr(FRQ[f_],4)}, v{TMP+8} offset:{EXo+f_*1024}")
    a(f"v_cvt_f32_u32 v{TMP+9}, v{TMP+9}")
    a("s_waitcnt vmcnt(0)")
    for i in range(16): a(f"v_mul_f32 v{Uo+i}, v{TMP+9}, v{B2+i}")
    a("s_nop 0")
    for f_ in range(16):
        a(f"s_waitcnt lgkmcnt({15-f_})")
        a(mfma(Uo,W2Q[f_],FRQ[f_],Uo))
    a(f"v_add_u32 v{TMP+8}, s{sSTART}, v{TMP+7}",f"v_lshlrev_b32 v{TMP+8}, 8, v{TMP+8}")
    a(f"v_lshrrev_b32 v{TMP+6}, 5, v{lane}",f"v_lshl_add_u32 v{TMP+8}, v{TMP+6}, 5, v{TMP+8}")
    a(f"s_lshl_b32 s42, s{sWAVE}, 6",f"v_add_u32 v{TMP+8}, s42, v{TMP+8}")
    a(f"v_cmp_gt_u32 vcc, s{sCOUNT}, v{TMP+7}",f"v_mov_b32 v{TMP+6}, 0x7f000000")
    a("s_nop 1")
    a(f"v_cndmask_b32 v{TMP+8}, v{TMP+6}, v{TMP+8}, vcc")
    a("s_nop 4")
    for j in range(8): a(f"v_cvt_pk_bf16_f32 v{H+j}, v{Uo+2*j}, v{Uo+2*j+1}")
    a(f"buffer_store_dwordx4 {vr(H,4)}, v{TMP+8}, s[{sOUT}:{sOUT+3}], 0 offen")
    a(f"buffer_store_dwordx4 {vr(H+4,4)}, v{TMP+8}, s[{sOUT}:{sOUT+3}], 0 offen offset:16")
    if PROF:
        stamp(a,6)
        PB=U[1]
        a("s_waitcnt lgkmcnt(0)")
        a(f"s_lshl_b32 s42, s{sB}, 2",f"s_add_u32 s42, s42, s{sWAVE}","s_lshl_b32 s42, s42, 6",f"s_add_u32 s42, s42, {WS_PROF}")
        for i in range(7): a(f"v_mov_b32 v{PB+i}, s{64+2*i}")
        a(f"v_mov_b32 v{PB+7}, s{sNT}")
        a(f"v_mov_b32 v{TMP}, 0")
        a("s_mov_b64 exec, 1")
        a(f"buffer_store_dwordx4 {vr(PB,4)}, v{TMP}, s[{sWS}:{sWS+3}], s42 offen")
        a(f"buffer_store_dwordx4 {vr(PB+4,4)}, v{TMP}, s[{sWS}:{sWS+3}], s42 offen offset:16")
        a("s_sub_u32 s92, s94, s92",f"v_mov_b32 v{PB+8}, s92")
        a(f"buffer_store_dword v{PB+8}, v{TMP}, s[{sWS}:{sWS+3}], s42 offen offset:32")
    a("s_waitcnt vmcnt(0)")
    a("s_endpgm")
    a("K2_SLOW:")
    if NB1: a("s_waitcnt lgkmcnt(0)","s_barrier")
    a("s_waitcnt vmcnt(0)")
    cch=62
    a(f"s_ff1_i32_b64 s{cch}, s[{sF0}:{sF0+1}]",f"s_cmp_lg_u32 s{cch}, -1","s_cbranch_scc1 K2_SL1")
    a(f"s_ff1_i32_b32 s{cch}, s{sF1}",f"s_add_u32 s{cch}, s{cch}, 64")
    a("K2_SL1:")
    a(f"s_mul_i32 s63, s{cch}, 2000",f"s_mul_i32 s42, s{sHALF}, 1000","s_add_u32 s63, s63, s42")
    a(f"s_cmp_eq_u32 s{sHALF}, 0","s_cbranch_scc1 K2_SL2")
    a(f"s_cmp_ge_u32 s{cch}, 64","s_cbranch_scc1 K2_SL3")
    a(f"s_bitset0_b64 s[{sF0}:{sF0+1}], s{cch}","s_branch K2_SL2")
    a("K2_SL3:")
    a(f"s_sub_u32 s42, s{cch}, 64",f"s_bitset0_b32 s{sF1}, s42")
    a("K2_SL2:")
    a(f"s_xor_b32 s{sHALF}, s{sHALF}, 1")
    a("s_load_dwordx4 s[4:7], s[0:1], 16")
    for k in range(4): a(f"v_mov_b32 v{n4+k}, 0x{NULLI:x}")
    a(f"v_lshlrev_b32 v{tid16}, 4, v0")
    list_fill(a,tid16,n4,XF+28)
    a(f"v_mov_b32 v{z}, {CNT}",f"v_mov_b32 v{z+1}, 0",f"ds_write_b32 v{z}, v{z+1}")
    a("s_waitcnt lgkmcnt(0)")
    srd(a,24,4,640000); srd(a,28,6,640000)
    a("s_lshl_b32 s42, s63, 2")
    dv=XF+8; sv=XF+12
    a(f"buffer_load_dwordx4 {vr(dv,4)}, v{tid16}, s[28:31], s42 offen")
    a(f"buffer_load_dwordx4 {vr(sv,4)}, v{tid16}, s[24:27], s42 offen")
    a("s_barrier")
    a(f"s_mov_b32 s42, {MAGIC}","s_movk_i32 s43, 625")
    a("s_waitcnt vmcnt(0)")
    bk=XF+16
    for j in range(4):
        a(f"v_mul_u32_u24 v{bk+j}, s42, v{dv+j}",f"v_lshrrev_b32 v{bk+j}, 23, v{bk+j}")
    a("v_cmp_gt_u32 vcc, 250, v0","s_nop 0","s_mov_b64 s[54:55], vcc")
    def mg2(j):
        a(f"v_cmp_eq_u32_e64 s[{sMASK+2*j}:{sMASK+2*j+1}], s{sB}, v{bk+j}")
        a("s_nop 0")
        a(f"s_and_b64 s[{sMASK+2*j}:{sMASK+2*j+1}], s[{sMASK+2*j}:{sMASK+2*j+1}], s[54:55]")
    def fg2(j):
        a(f"v_mov_b32 v{tA}, v{sv+j}",f"v_subrev_u32 v{tB}, s{sSTART}, v{dv+j}",f"v_lshlrev_b32 v{tC}, 2, v0",f"v_add_u32 v{tC}, s63, v{tC}")
        if j: a(f"v_add_u32 v{tC}, {j}, v{tC}")
    compact(a,4,mg2,fg2,tP,tA,tB,tC,tOne,tz)
    a("s_waitcnt lgkmcnt(0)","s_barrier")
    read_n_flags(False)
    a(f"v_mov_b32 v{vLX}, v{TMP+2}",f"v_mov_b32 v{vLA}, v{TMP+3}",f"v_mov_b32 v{vLB}, v{TMP+1}")
    offs()
    idx_group(a,0,PI,AX); idx_group(a,1,G1P[:4],G1P[4])
    dma_group(a,0,PI,AX,wait=5)
    use_n_flags(False)
    dma_group(a,1,G1P[:4],G1P[4],wait=0)
    a("s_branch K2_PIPE")
    if PRIO:
        for p in range(3):
            for (r,pr) in PRIO:
                a(f"K2_PR{p}_{pr}:",f"s_setprio {pr}",f"s_branch K2_PRB{p}_{pr}")
    a("K2_EXIT:")
    a("s_endpgm")
    print("hazard errors:",errs,file=sys.stderr)
    return a

def kd(name,vgpr,sgpr=96):
    return f""".amdhsa_kernel {name}
  .amdhsa_next_free_vgpr {vgpr}
  .amdhsa_next_free_sgpr {sgpr}
  .amdhsa_accum_offset {(vgpr+3)//4*4}
  .amdhsa_group_segment_fixed_size 0
  .amdhsa_kernarg_size 88
  .amdhsa_user_sgpr_count 2
  .amdhsa_user_sgpr_kernarg_segment_ptr 1
  .amdhsa_system_sgpr_workgroup_id_x 1
.end_amdhsa_kernel
"""
HDR=open("standalone__edge_featured_mpnn_mpnn__graph.s.ref").read().split("; Override")[0]
def full():
    o=HDR
    o+=f"; @launch kernel=k1_bin_prep_kernel grid=({K1N},1,1) block=(512,1,1) lds={LDS1}\n"
    o+=f"; @launch kernel=k2_main_kernel grid=(512,1,1) block=(256,1,1) lds={LDS2}\n"
    o+='.amdgcn_target "amdgcn-amd-amdhsa--gfx950"\n.text\n'
    for nm,g in (("k1_bin_prep_kernel",g4k1.gen_k1(OPT.get('smod',''),OPT.get('lmod',''),OPT.get('srcmask'),PROF)),("k2_main_kernel",gen_k2())):
        o+=f".globl {nm}\n.p2align 8\n.type {nm},@function\n"+g.text()
    o+='.section .rodata,"a"\n'
    o+=".p2align 6\n"+kd("k1_bin_prep_kernel",156,48)
    o+=".p2align 6\n"+kd("k2_main_kernel",256,96)
    return o
if __name__=="__main__":
    open(sys.argv[1],"w").write(full())
    print("K1N",K1N,"LDS1",LDS1,"LDS2",LDS2)
```
